```python
import torch

def _softmax(x, axis=-1):
    return torch.softmax(x, dim=axis)
def _gelu(x):
    return torch.nn.functional.gelu(x, approximate="tanh")
def _silu(x):
    return torch.nn.functional.silu(x)
def _sigmoid(x):
    return torch.sigmoid(x)
def _layernorm(x, axis=-1, eps=1e-5):
    m = x.mean(dim=axis, keepdim=True)
    v = x.var(dim=axis, keepdim=True, unbiased=False)
    return (x - m) / torch.sqrt(v + eps)
def _scatter_add(tgt, idx, src, axis=0):
    return tgt.clone().index_add_(axis, idx, src)
def _segment_sum(src, seg, n):
    out = torch.zeros((n,) + src.shape[1:], dtype=src.dtype)
    return out.index_add_(0, seg, src)
def _pad(x, pw):
    flat = tuple(v for pair in reversed(pw) for v in pair)
    return torch.nn.functional.pad(x, flat)

kernel_name = 'gated_mix__ssm_conv_s4__glu_gated_glu__prompt'

def setup_inputs():

    _w = (lambda a: (lambda t: t.to(torch.bfloat16) if t.is_floating_point() else t)(torch.as_tensor(a)))
    def _A_setup():
        B, L, D, N = 1, 2048, 448, 256
        A_re = -(lambda _x: torch.exp(torch.as_tensor(_x)))((lambda *s: torch.randn(*s, dtype=torch.bfloat16) * 6.4)(D, N))
        A_im = torch.pi * (lambda *s: torch.randn(*s, dtype=torch.bfloat16) * 0.1)(D, N)
        B_re = (lambda *s: torch.randn(*s, dtype=torch.bfloat16) * 0.2)(D, N)
        B_im = (lambda *s: torch.randn(*s, dtype=torch.bfloat16) * 0.2)(D, N)
        C_re = (lambda *s: torch.randn(*s, dtype=torch.bfloat16) * 0.2)(D, N)
        C_im = (lambda *s: torch.randn(*s, dtype=torch.bfloat16) * 0.2)(D, N)
        log_dt = (lambda *s: torch.randn(*s, dtype=torch.bfloat16) * 0.1)(D) * 0.5 - 4.0
        Dskip = (lambda *s: torch.randn(*s, dtype=torch.bfloat16) * 0.1)(D)
        return {
            "u": _w((lambda *s: torch.randn(*s, dtype=torch.bfloat16) * 0.05)(B, L, D)),
            "A_re": _w(A_re),
            "A_im": _w(A_im),
            "B_re": _w(B_re),
            "B_im": _w(B_im),
            "C_re": _w(C_re),
            "C_im": _w(C_im),
            "log_dt": _w(log_dt),
            "Dskip": _w(Dskip),
        }
    _A_in = _A_setup()

    def _B_setup():
        B, S, D, F = 1, 2048, 448, 1792
        return {
            "x": _w((lambda *s: torch.randn(*s, dtype=torch.bfloat16) * 0.05)(B, S, D)),
            "w_gate": _w((lambda *s: torch.randn(*s, dtype=torch.bfloat16) * 0.4)(D, F)),
            "w_up": _w((lambda *s: torch.randn(*s, dtype=torch.bfloat16) * 0.05)(D, F)),
            "w_down": _w((lambda *s: torch.randn(*s, dtype=torch.bfloat16) * 0.05)(F, D)),
        }
    _B_in = _B_setup()

    return {
        "A_u": _A_in["u"],
        "A_A_re": _A_in["A_re"],
        "A_A_im": _A_in["A_im"],
        "A_B_re": _A_in["B_re"],
        "A_B_im": _A_in["B_im"],
        "A_C_re": _A_in["C_re"],
        "A_C_im": _A_in["C_im"],
        "A_log_dt": _A_in["log_dt"],
        "A_Dskip": _A_in["Dskip"],
        "B_x": _B_in["x"],
        "B_w_gate": _B_in["w_gate"],
        "B_w_up": _B_in["w_up"],
        "B_w_down": _B_in["w_down"],
        "gate_w": _w((lambda *s: torch.randn(*s, dtype=torch.bfloat16) * 0.05)(448) * 16.0),
    }

def reference(A_u, A_A_re, A_A_im, A_B_re, A_B_im, A_C_re, A_C_im, A_log_dt, A_Dskip, B_x, B_w_gate, B_w_up, B_w_down, gate_w):
    def _A_ref(u, A_re, A_im, B_re, B_im, C_re, C_im, log_dt, Dskip):
        Bsz, L, D = u.shape
        dt = torch.exp(log_dt)[:, None]
        A = A_re + 1j * A_im
        Bc = B_re + 1j * B_im
        Cc = C_re + 1j * C_im
        logdA = dt * A
        dB = dt * Bc
        l = (lambda x, dt: x.to(dt))(torch.arange(L), A_re.dtype)
        P = torch.exp(logdA[:, :, None] * l[None, None, :])
        K = torch.einsum("dn,dnl,dn->dl", Cc, P, dB).real
        L2 = 2 * L
        Kp = _pad(K, ((0, 0), (0, L)))
        up = (lambda x, *d: x.permute(*d))(u, 0, 2, 1)
        up = _pad(up, ((0, 0), (0, 0), (0, L)))
        Kf = (lambda x, axes=(-2,-1): torch.fft.rfft2(x.float(), dim=axes))(Kp[:, None, :], axes=(-2, -1))
        Uf = (lambda x, axes=(-2,-1): torch.fft.rfft2(x.float(), dim=axes))(up[:, :, None, :], axes=(-2, -1))
        Yf = Uf * Kf[None, :, :, :]
        y = (lambda x, s, axes=(-2,-1): torch.fft.irfft2(x, s=s, dim=axes).to(torch.bfloat16))(Yf, (1, L2), axes=(-2, -1))[:, :, 0, :L]
        y = (lambda x, *d: x.permute(*d))(y, 0, 2, 1) + u * Dskip[None, None, :]
        return y

    def _B_ref(x, w_gate, w_up, w_down):
        g = torch.einsum("bsd,df->bsf", x, w_gate)
        u = torch.einsum("bsd,df->bsf", x, w_up)
        h = _sigmoid(g) * u
        return torch.einsum("bsf,fd->bsd", h, w_down)

    x = A_u
    g = _sigmoid((x * gate_w).sum(-1, keepdims=True))
    a = _A_ref(x, A_A_re, A_A_im, A_B_re, A_B_im, A_C_re, A_C_im, A_log_dt, A_Dskip)
    b = _B_ref(x, B_w_gate, B_w_up, B_w_down)
    return g * a + (1 - g) * b
```

```python
import re

TRANS = ("v_exp_f32", "v_rcp_f32", "v_sin_f32", "v_cos_f32", "v_log_f32", "v_rsq_f32", "v_sqrt_f32")

def _regs(tok):
    tok = tok.strip()
    if tok.startswith("-"): tok = tok[1:]
    if tok.startswith("abs("): tok = tok[4:-1]
    if tok.startswith("|"): tok = tok.strip("|")
    m = re.fullmatch(r"([vsa])(\d+)", tok)
    if m: return {(m.group(1), int(m.group(2)))}
    m = re.fullmatch(r"([vsa])\[(\d+):(\d+)\]", tok)
    if m: return {(m.group(1), i) for i in range(int(m.group(2)), int(m.group(3)) + 1)}
    if tok == "vcc": return {("s", "vcc")}
    if tok in ("vcc_lo", "vcc_hi"): return {("s", "vcc")}
    if tok == "m0": return {("s", "m0")}
    if tok in ("exec", "exec_lo", "exec_hi"): return {("s", "exec")}
    return set()

class Ins:
    def __init__(self, text):
        self.text = text
        t = text.split(";")[0].strip()
        self.label = t.endswith(":")
        self.op = t.split()[0] if t else ""
        rest = t[len(self.op):].strip()
        ops = []; depth = 0; cur = ""
        for ch in rest:
            if ch == "[": depth += 1
            if ch == "]": depth -= 1
            if ch == "," and depth == 0: ops.append(cur); cur = ""
            else: cur += ch
        if cur.strip(): ops.append(cur)
        mods = ""
        if ops:
            last = ops[-1].strip().split(None, 1)
            ops[-1] = last[0]
            mods = last[1] if len(last) > 1 else ""
        self.ops = [o.strip() for o in ops]; self.mods = mods
        op = self.op
        self.mfma = op.startswith("v_mfma")
        self.valu = op.startswith("v_") and not self.mfma
        self.trans = any(op.startswith(x) for x in TRANS)
        self.dpp = "_dpp" in op or any(k in mods for k in ("quad_perm", "row_shr", "row_shl", "row_ror", "wave_ror", "wave_shr", "row_mirror", "row_half_mirror", "row_bcast"))
        self.perml = op.startswith("v_permlane")
        self.dot = op.startswith("v_dot")
        self.ds = op.startswith("ds_")
        self.vmem = op.startswith("buffer_") or op.startswith("global_")
        self.salu = op.startswith("s_")
        self.ldsdma = self.vmem and (" lds" in (" " + mods) or "load_lds" in op)
        self.w = set(); self.r = set(); self.srcC = set(); self.srcAB = set(); self.stdata = set()
        o = self.ops
        R = lambda i: _regs(o[i]) if i < len(o) else set()
        if self.label or not op or op.startswith("."): return
        if self.mfma:
            self.w = R(0); self.srcAB = R(1) | R(2); self.srcC = R(3); self.r = self.srcAB | self.srcC
            self.passes = 8 if "32x32x16" in op else 4
        elif self.valu:
            self.w = R(0)
            for i in range(1, len(o)): self.r |= R(i)
            if op.startswith("v_fmac") or op.startswith("v_dot2c") or self.dpp or "d16" in op: self.r |= R(0)
            if self.perml: self.w |= R(1); self.r |= R(0)
            if op.startswith("v_add_co") or op.startswith("v_addc_co"): self.w |= R(1)
            if op.startswith("v_cndmask") and len(o) == 3: self.r |= {("s", "vcc")}
        elif self.ds:
            if op.startswith("ds_read") or "rtn" in op or op.startswith("ds_bpermute"):
                self.w = R(0)
                for i in range(1, len(o)): self.r |= R(i)
            else:
                for i in range(len(o)): self.r |= R(i)
        elif self.vmem:
            if self.ldsdma:
                for i in range(len(o)): self.r |= R(i)
                self.r |= {("s", "m0")}
            elif "load" in op:
                self.w = R(0)
                for i in range(1, len(o)): self.r |= R(i)
            else:
                for i in range(len(o)): self.r |= R(i)
                if "x4" in op or "x3" in op:
                    self.stdata = R(0) if op.startswith("buffer_") else R(1)
        elif self.salu:
            if op.startswith(("s_cmp", "s_cbranch", "s_branch", "s_waitcnt", "s_barrier", "s_nop", "s_endpgm", "s_setprio", "s_sleep")):
                for i in range(len(o)): self.r |= R(i)
            else:
                self.w = R(0)
                for i in range(1, len(o)): self.r |= R(i)
                if "saveexec" in op: self.w |= {("s", "exec")}
    def states(self):
        if self.label or not self.op or self.op.startswith("."): return 0
        if self.op == "s_nop": return int(self.ops[0], 0) + 1
        return 1

def need(p, c):
    n = 0
    vw = {x for x in p.w if x[0] != "s"}; sw = {x for x in p.w if x[0] == "s"}
    if p.valu:
        if c.mfma and vw & c.r: n = max(n, 2)
        if p.trans and vw & c.r and not c.trans: n = max(n, 1)
        if p.trans and vw & c.r and c.trans: n = max(n, 1)
        if (c.dpp or c.perml) and vw & c.r: n = max(n, 2)
        if c.op.startswith(("v_readfirstlane", "v_readlane")) and vw & c.r: n = max(n, 1)
        if sw & c.r:
            if c.valu or c.mfma: n = max(n, 2)
            if c.vmem: n = max(n, 5)
            if c.salu: n = max(n, 2)
        if p.dot and vw & (c.r | c.w):
            if not (c.op == p.op and vw & _regs(c.ops[-1]) and not vw & (_regs(c.ops[1]) | _regs(c.ops[2]))): n = max(n, 3)
    if p.mfma:
        big = 12 if p.passes == 8 else 8
        if c.mfma:
            if p.w & c.srcAB: n = max(n, big)
            if p.w & c.srcC and p.w != c.srcC: n = max(n, big - 2)
            if p.w & c.w and not (p.w & c.srcC): n = max(n, big)
        elif c.valu or c.ds or c.vmem:
            if p.w & (c.r | c.w): n = max(n, big)
            if c.valu and p.srcC & c.w: n = max(n, 7 if p.passes == 8 else 3)
    if p.salu and ("s", "m0") in p.w and c.ldsdma: n = max(n, 1)
    if p.stdata and p.stdata & c.w: n = max(n, 2)
    return n

class Asm:
    def __init__(self):
        self.ins = []
        self.nlab = 0
    def __call__(self, text):
        for line in text.split("\n"):
            line = line.strip()
            if line and not line.startswith(";"): self._add(Ins(line))
    def _add(self, c):
        if not (c.label or c.op.startswith(".")):
            dist = 0; req = 0
            for p in reversed(self.ins):
                if dist >= 12: break
                if p.op in ("s_branch", "s_endpgm"): break
                k = need(p, c)
                if k - dist > req: req = k - dist
                dist += p.states()
            if req > 0:
                self.ins.append(Ins(f"s_nop {req-1}"))
        self.ins.append(c)
    def label(self, base):
        self.nlab += 1
        return f"L_{base}_{self.nlab}"
    def pos(self): return len(self.ins)
    def check_backedge(self, start, end):
        body = self.ins[start:end]
        seq = body + body
        for ci in range(len(body), len(seq)):
            c = seq[ci]
            if c.label: continue
            dist = 0
            for pi in range(ci - 1, -1, -1):
                if dist >= 12: break
                p = seq[pi]
                k = need(p, c)
                assert k <= dist, f"backedge hazard: {p.text} -> {c.text} need {k} have {dist}"
                dist += p.states()
    def text(self):
        out = []
        for i in self.ins:
            out.append(i.text if (i.label or i.op.startswith(".")) else "  " + i.text)
        return "\n".join(out) + "\n"

def v(a, n=1): return f"v{a}" if n == 1 else f"v[{a}:{a+n-1}]"
def s(a, n=1): return f"s{a}" if n == 1 else f"s[{a}:{a+n-1}]"
```

```python
import sys, math
from asmlib import Asm, v, s

NAME = "gated_mix__ssm_conv_s4__glu_gated_glu__prompt"
PROF = "--prof" in sys.argv
DUMPK = "--dumpk" in sys.argv
OUT = [a for a in sys.argv[1:] if a.endswith(".s")]
OUT = OUT[0] if OUT else "cdna_kernels/" + NAME + ".s"

WS_EPOCH = 0
WS_FLAGU = 0x1000
WS_G = 0x4000
WS_FLAGA = 0x10000
WS_FLAGH = 0x50000
WS_UT = 0x100000
WS_AT = 0x300000
WS_H = 0x500000
WS_DBG = 0xC00000
WS_USED = 0x1000000
UNIT = 16384
RING = 7 * UNIT
SCR = 3 * UNIT
SB = 3 * UNIT
RS = 1216
UB = SB
KB = SB + 8 * RS
KS = 4160
XCH = SB + 18432
CNT = XCH + 2048 - 16 * 0
GL = CNT + 256
ATL = SB + 21504
UNIT_OF = [0, 1, 2, 9, 5, 7, 6, 8, 0, 1, 2, 9, 5, 7]
SPIN = 4000

sW, sX, sJ, sJQ, sJR, sW4 = 3, 4, 5, 6, 7, 8
P_U, P_ARE, P_AIM, P_BRE, P_BIM, P_CRE, P_CIM, P_LDT, P_DSK, P_BX, P_WG, P_WU, P_WD, P_GW, P_OUT, P_DBG, P_WS = range(16, 50, 2)
sNON = 50
R_X, R_WG, R_WU, R_WD, R_WS, R_OUT = 52, 56, 60, 64, 68, 72
sPI = 76
sLB, sFB, sT2, sPAIR, sNL2E, sCH, sLDT, sDSK = 83, 84, 85, 86, 87, 88, 89, 90
sT0, sT1, sT2_, sT3, sCNT = 9, 10, 11, 12, 13
sEX = 14
sPROF = 92

LOG2E = 1.4426950408889634
def f32(x):
    import struct
    return "0x%08x" % struct.unpack("<I", struct.pack("<f", x))[0]

a = Asm()

vPROF = None
def stamp(i, vreg):
    if PROF:
        a(f"s_memtime s[92:93]\ns_waitcnt lgkmcnt(0)\nv_writelane_b32 v{vreg}, s92, {i}")
def dump_stamps(vreg):
    if PROF:
        a(f"""s_lshl_b32 s92, s2, 3
s_add_u32 s92, s92, s{sW}
s_lshl_b32 s92, s92, 8
s_add_u32 s92, s92, {WS_DBG + 0x200000}
v_lshlrev_b32 v1, 2, v0
buffer_store_dword v{vreg}, v1, {s(R_WS,4)}, s92 offen""")

def srd(r, p, n):
    a(f"s_mov_b32 s{r}, s{p}\ns_mov_b32 s{r+1}, s{p+1}\ns_mov_b32 s{r+2}, {n}\ns_mov_b32 s{r+3}, 0x20000")

def cmul(d, x, m, t, conj=False):
    i1 = f"v_pk_mul_f32 {v(t,2)}, {v(x,2)}, {v(m,2)} op_sel:[0,0] op_sel_hi:[0,1]" + (" neg_hi:[0,1]" if conj else "")
    i2 = f"v_pk_fma_f32 {v(d,2)}, {v(x,2)}, {v(m,2)}, {v(t,2)} op_sel:[1,1,0] op_sel_hi:[1,0,1]" + ("" if conj else " neg_lo:[1,0,0]")
    return i1, i2
def cmuls(lst, temps):
    pairs = [cmul(d, x, m, temps[i], cj) for i, (d, x, m, cj) in enumerate(lst)]
    for p in pairs: a(p[0])
    for p in pairs: a(p[1])

def poll(vdst, voff, soff, resume=None):
    L = a.label("poll"); E = a.label("pollend")
    a(f"""s_mov_b32 s{sCNT}, {SPIN}
{L}:
buffer_load_dword v{vdst}, v{voff}, {s(R_WS,4)}, {soff} offen sc1
s_waitcnt vmcnt(0)
v_cmp_ne_u32 vcc, s{sNON}, v{vdst}
s_cbranch_vccz {E}
s_sub_u32 s{sCNT}, s{sCNT}, 1
s_cmp_lg_u32 s{sCNT}, 0
s_cbranch_scc1 {L}
{E}:""")
def check_or_poll(vdst, voff, soff):
    E = a.label("ok")
    a(f"v_cmp_ne_u32 vcc, s{sNON}, v{vdst}\ns_cbranch_vccz {E}")
    poll(vdst, voff, soff)
    a(f"{E}:")
def nonce_issue(vdst, vzero):
    a(f"global_load_dword v{vdst}, v{vzero}, {s(P_DBG,2)} sc1")
def nonce_check(vdst, vzero):
    L = a.label("non"); E = a.label("nonend")
    a(f"""s_mov_b32 s{sCNT}, {SPIN}
{L}:
v_readfirstlane_b32 s{sNON}, v{vdst}
s_cmp_lg_u32 s{sNON}, 0
s_cbranch_scc1 {E}
global_load_dword v{vdst}, v{vzero}, {s(P_DBG,2)} sc1
s_waitcnt vmcnt(0)
s_sub_u32 s{sCNT}, s{sCNT}, 1
s_cmp_lg_u32 s{sCNT}, 0
s_cbranch_scc1 {L}
{E}:""")

a(f"""{NAME}_kernel:
s_cmp_ge_u32 s2, 256
s_cbranch_scc1 L_exit
s_load_dwordx16 s[16:31], s[0:1], 0
s_load_dwordx16 s[32:47], s[0:1], 64
s_load_dwordx2 s[48:49], s[0:1], 128
v_lshrrev_b32 v1, 6, v0
v_and_b32 v0, 63, v0
v_readfirstlane_b32 s{sW}, v1
s_and_b32 s{sX}, s2, 7
s_lshr_b32 s{sJ}, s2, 3
s_cmp_ge_u32 s{sJ}, 28
s_cbranch_scc1 L_helper
s_mul_i32 s{sJQ}, s{sJ}, 37
s_lshr_b32 s{sJQ}, s{sJQ}, 8
s_mul_i32 s{sT0}, s{sJQ}, 7
s_sub_u32 s{sJR}, s{sJ}, s{sT0}
s_and_b32 s{sW4}, s{sW}, 3
s_mul_i32 s{sPAIR}, s{sX}, 28
s_add_u32 s{sPAIR}, s{sPAIR}, s{sJ}
s_lshr_b32 s{sCH}, s{sW}, 1
s_and_b32 s{sCH}, s{sCH}, 1
""")
VP = 31
if PROF: a(f"v_mov_b32 v{VP}, 0")
stamp(0, VP)
KP = 128
a(f"""s_and_b32 s{sT0}, s{sW}, 1
s_lshr_b32 s{sT1}, s{sW}, 2
s_lshl_b32 s{sT1}, s{sT1}, 1
s_add_u32 s{sT0}, s{sT0}, s{sT1}
s_lshl_b32 s{sT0}, s{sT0}, 7
s_lshl_b32 s{sT1}, s{sPAIR}, 1
s_add_u32 s{sT1}, s{sT1}, s{sCH}
s_lshl_b32 s{sT1}, s{sT1}, 9
s_add_u32 s{sT0}, s{sT0}, s{sT1}
v_lshl_add_u32 v16, v0, 1, s{sT0}
s_lshl_b32 s{sT1}, s{sPAIR}, 2
""")
for i in range(6): a(f"v_mov_b32 v{KP+i}, 0")
a("s_waitcnt lgkmcnt(0)")
for i, p in enumerate([P_ARE, P_AIM, P_BRE, P_BIM, P_CRE, P_CIM]):
    a(f"global_load_short_d16_hi v{KP+i}, v16, {s(p,2)}")
a(f"s_load_dword s{sLDT}, {s(P_LDT,2)}, s{sT1}\ns_load_dword s{sDSK}, {s(P_DSK,2)}, s{sT1}")
a(f"""s_lshr_b32 s{sLB}, s{sX}, 1
s_lshl_b32 s{sLB}, s{sLB}, 2
s_add_u32 s{sLB}, s{sLB}, s{sJQ}
s_and_b32 s{sFB}, s{sX}, 1
s_mul_i32 s{sFB}, s{sFB}, 7
s_add_u32 s{sFB}, s{sFB}, s{sJR}
s_lshl_b32 s{sT2}, s{sX}, 2
s_add_u32 s{sT2}, s{sT2}, s{sJQ}
s_lshl_b32 s{sPI}, s{sJQ}, 1
s_add_u32 s{sPI}, s{sPI}, s{sJR}
s_sub_u32 s{sT0}, s{sPI}, 7
s_cmp_ge_u32 s{sPI}, 7
s_cselect_b32 s{sPI}, s{sT0}, s{sPI}
""")
for i in range(1, 7):
    a(f"s_add_u32 s{sPI+i}, s{sPI+i-1}, 1\ns_cmp_eq_u32 s{sPI+i}, 7\ns_cselect_b32 s{sPI+i}, 0, s{sPI+i}")
srd(R_X, P_U, 2048*896); srd(R_WG, P_WG, 448*3584); srd(R_WU, P_WU, 448*3584); srd(R_WD, P_WD, 1792*896)
srd(R_WS, P_WS, WS_USED); srd(R_OUT, P_OUT, 2048*896)
a(f"s_mov_b32 s{sNL2E}, {f32(-LOG2E)}")
vXD, vWDm, vWdD, vFLG = 1, 2, 9, 7
a(f"""v_lshrrev_b32 v17, 3, v0
v_and_b32 v18, 7, v0
v_lshlrev_b32 v{vFLG}, 2, v0
v_lshlrev_b32 v6, 4, v0
v_mov_b32 v8, 0
v_lshlrev_b32 v19, 1, v17
v_and_b32 v19, 4, v19
v_xor_b32 v19, v19, v18
v_lshlrev_b32 v19, 4, v19
v_mul_u32_u24 v20, 896, v17
v_add_u32 v{vWdD}, v19, v20
s_lshr_b32 s{sT0}, s{sW4}, 1
s_mul_i32 s{sT0}, s{sT0}, {896*896}
s_and_b32 s{sT1}, s{sW4}, 1
s_mul_i32 s{sT1}, s{sT1}, {32*896}
s_add_u32 s{sT0}, s{sT0}, s{sT1}
s_lshl_b32 s{sT1}, s{sJR}, 7
s_add_u32 s{sT0}, s{sT0}, s{sT1}
v_add_u32 v{vWdD}, s{sT0}, v{vWdD}
s_cmp_lt_u32 s{sW}, 4
s_cbranch_scc1 L_glu_pre
""")
a(f"""; X: row l = 256*(lb>>1) + 32*(lb&1) + 2w + (r8>>2) + 64*(r8&3) (+8i); chunk c = c' ^ (4*(w&1) + (r8>>1))
v_and_b32 v20, 3, v17
v_lshlrev_b32 v20, 6, v20
v_lshrrev_b32 v21, 2, v17
v_add_u32 v20, v20, v21
s_lshr_b32 s{sT0}, s{sLB}, 1
s_lshl_b32 s{sT0}, s{sT0}, 8
s_and_b32 s{sT1}, s{sLB}, 1
s_lshl_b32 s{sT1}, s{sT1}, 5
s_add_u32 s{sT0}, s{sT0}, s{sT1}
s_lshl_b32 s{sT1}, s{sW4}, 1
s_add_u32 s{sT0}, s{sT0}, s{sT1}
v_add_u32 v20, s{sT0}, v20
v_mul_u32_u24 v20, 896, v20
s_and_b32 s{sT1}, s{sW4}, 1
s_lshl_b32 s{sT1}, s{sT1}, 2
v_lshrrev_b32 v21, 1, v17
v_add_u32 v21, s{sT1}, v21
v_xor_b32 v21, v21, v18
v_lshl_add_u32 v{vXD}, v21, 4, v20
s_lshl_b32 s{sT0}, s{sW4}, 3
v_add_u32 v20, s{sT0}, v17
v_mul_u32_u24 v20, 3584, v20
s_lshl_b32 s{sT0}, s{sFB}, 8
v_add3_u32 v{vWDm}, v20, v19, s{sT0}
s_lshl_b32 s91, s{sW4}, 10
""")
sWK = 91
def dma_x(slot):
    a(f"s_lshl_b32 s{sT0}, s{sPI+slot}, 7")
    for i in range(4):
        a(f"s_add_u32 m0, s{sWK}, {slot*UNIT + i*4096}")
        if i: a(f"s_add_u32 s{sT0}, s{sT0}, 7168")
        a(f"buffer_load_dwordx4 v{vXD}, {s(R_X,4)}, s{sT0} offen lds")
    return 4
def dma_w(g):
    p, i7 = divmod(g, 7)
    a(f"s_mul_i32 s{sT0}, s{sPI+i7}, {64*3584}")
    if p: a(f"s_add_u32 s{sT0}, s{sT0}, 128")
    a(f"s_add_u32 s{sT1}, s{sT0}, {32*3584}")
    for up in range(2):
        for i in range(2):
            a(f"s_add_u32 m0, s{sWK}, {RING + (g%3)*UNIT + up*8192 + i*4096}")
            a(f"buffer_load_dwordx4 v{vWDm}, {s(R_WU if up else R_WG,4)}, s{sT1 if i else sT0} offen lds")
    return 4
sWK4 = 15
def dma_wd_list(n):
    p, i7 = divmod(n, 7)
    out = []
    for i in range(4):
        g = []
        if i == 0:
            g.append(f"s_mul_i32 s{sT3}, s{sPI+i7}, {128*896}")
            if p: g.append(f"s_add_u32 s{sT3}, s{sT3}, {64*896}")
        else:
            g.append(f"s_add_u32 s{sT3}, s{sT3}, 7168")
        g.append(f"s_add_u32 m0, s{sWK4}, {UNIT_OF[n]*UNIT + i*1024}")
        g.append(f"buffer_load_dwordx4 v{vWdD}, {s(R_WD,4)}, s{sT3} offen lds")
        out.append("\n".join(g))
    return out
def dma_wd(n):
    for g in dma_wd_list(n): a(g)
    return 4
for g in range(3):
    dma_x(g); dma_w(g)
a("s_waitcnt vmcnt(24)\ns_branch L_kgen")
vXA, vWA = 1, 5
vL16, vPOL = 6, 8
vWB = 10
F0, F1 = 32, 48
ACA, ACB = 64, 128
a(f"""L_glu_pre:
v_and_b32 v19, 31, v0
v_lshrrev_b32 v20, 5, v0
s_and_b32 s{sT0}, s{sW4}, 1
s_lshl_b32 s{sT0}, s{sT0}, 13
v_lshl_add_u32 v21, v19, 7, s{sT0}
v_bfe_u32 v22, v0, 1, 3
v_xor_b32 v22, v22, v20
v_lshl_add_u32 v{vXA}, v22, 4, v21
v_xor_b32 v{vXA+1}, 32, v{vXA}
v_xor_b32 v{vXA+2}, 64, v{vXA}
v_xor_b32 v{vXA+3}, 96, v{vXA}
v_bfe_u32 v21, v0, 2, 2
v_and_b32 v22, 3, v0
v_lshlrev_b32 v22, 3, v22
v_bfe_u32 v23, v0, 4, 1
v_lshl_add_u32 v22, v23, 5, v22
v_lshl_add_u32 v22, v21, 7, v22
v_bfe_u32 v23, v0, 3, 1
v_lshl_add_u32 v22, v23, 6, v22
v_lshl_add_u32 v23, v20, 10, v22
s_lshr_b32 s{sT0}, s{sW4}, 1
s_lshl_b32 s{sT0}, s{sT0}, 6
v_xor_b32 v23, s{sT0}, v23
v_add_u32 v{vWA}, {RING}, v23
; Wd: + h*512 + w*4096
v_lshl_add_u32 v23, v20, 9, v22
s_lshl_b32 s{sT0}, s{sW4}, 12
v_add_u32 v{vWB}, s{sT0}, v23
v_xor_b32 v{vWB+1}, 64, v{vWB}
v_add_u32 v{vWB+2}, 0x10000, v{vWB}
v_add_u32 v{vWB+3}, 0x10000, v{vWB+1}
v_add_u32 v{vWB+4}, 0x20000, v{vWB}
v_add_u32 v{vWB+5}, 0x20000, v{vWB+1}
v_min_u32 v19, 6, v0
v_lshlrev_b32 v19, 10, v19
s_mul_i32 s{sT0}, s{sT2}, 14
s_lshr_b32 s{sT1}, s{sW4}, 1
s_mul_i32 s{sT1}, s{sT1}, 7
s_add_u32 s{sT0}, s{sT0}, s{sT1}
s_lshl_b32 s{sT0}, s{sT0}, 10
s_and_b32 s{sT1}, s{sW4}, 1
s_lshl_b32 s{sT1}, s{sT1}, 8
s_add_u32 s{sT0}, s{sT0}, s{sT1}
s_add_u32 s{sT0}, s{sT0}, {WS_FLAGH}
v_add_u32 v{vPOL}, s{sT0}, v19
""")
for r in list(range(F1, F1+16)) + list(range(ACA, ACA+64)): a(f"v_mov_b32 v{r}, 0")
a("s_waitcnt vmcnt(0)")

a("L_kgen:")
stamp(1, VP)
a(f"s_lshl_b32 s{sWK4}, s{sW4}, 12")
ARE, AIM, BRE, CRE = KP, KP+1, KP+2, KP+4
vDT = 134; E1, E2, E4, WC, W2, BE, BO = 136, 138, 140, 142, 144, 146, 148
TT = [150, 152, 154, 156, 158]
PX = {0: 16, 1: 18, 2: 20, 3: 22, 4: 24, 5: 26, 6: 28, 7: 130, 8: 132}
STG = [160, 168]
DACC, BFR, AFR = 176, 192, 224
vKW, vKR = 30, 135
a(f"""s_waitcnt lgkmcnt(0)
s_lshl_b32 s{sT0}, s{sLDT}, 16
s_and_b32 s{sT1}, s{sLDT}, 0xffff0000
s_cmp_eq_u32 s{sCH}, 0
s_cselect_b32 s{sT0}, s{sT0}, s{sT1}
v_mov_b32 v{vDT}, {f32(LOG2E)}
v_mul_f32 v{vDT}, s{sT0}, v{vDT}
v_exp_f32 v{vDT}, v{vDT}
; scratch write address: base + lane*64 + ((lane>>1)&3)*16
s_lshl_b32 s{sT0}, s{sW}, 13
s_add_u32 s{sT0}, s{sT0}, {SCR}
v_lshl_add_u32 v{vKW}, v0, 6, s{sT0}
v_cvt_pk_bf16_f32 v{vDT}, v{vDT}, v{vDT}
v_bfe_u32 v150, v0, 1, 2
v_lshl_add_u32 v{vKW}, v150, 4, v{vKW}
v_lshlrev_b32 v{vDT}, 16, v{vDT}
v_mul_f32 v150, {f32(LOG2E)}, v{vDT}
v_mul_f32 v151, {f32(1/(2*math.pi))}, v{vDT}
v_mul_f32 v{ARE}, v{ARE}, v150
v_mul_f32 v{AIM}, v{AIM}, v151
v_mul_f32 v152, 8.0, v{ARE}
v_mul_f32 v153, 8.0, v{AIM}
v_exp_f32 v152, v152
v_fract_f32 v153, v153
v_exp_f32 v154, v{ARE}
v_cos_f32 v{WC}, v153
v_sin_f32 v{WC+1}, -v153
v_fract_f32 v155, v{AIM}
v_pk_mul_f32 {v(WC,2)}, {v(WC,2)}, {v(152,2)} op_sel:[0,0] op_sel_hi:[1,0]
v_cos_f32 v{E1}, v155
v_sin_f32 v{E1+1}, v155
v_mov_b32 v{BE}, 1.0
v_mov_b32 v{BE+1}, 0
v_pk_mul_f32 {v(E1,2)}, {v(E1,2)}, {v(154,2)} op_sel:[0,0] op_sel_hi:[1,0]
""".replace("8.0", "0x41000000"))
cmuls([(W2, WC, WC, False), (PX[0], CRE, BRE, False), (E2, E1, E1, False)], TT)
a(f"""v_mov_b32 v{BO}, v{WC}
v_mov_b32 v{BO+1}, v{WC+1}
v_pk_mul_f32 {v(PX[0],2)}, {v(PX[0],2)}, {v(vDT,2)} op_sel:[0,0] op_sel_hi:[1,0]
v_bfe_u32 v156, v0, 2, 2
v_lshrrev_b32 v157, 5, v0
v_lshl_add_u32 v156, v157, 3, v156
v_lshl_add_u32 v{vKR}, v156, 6, s{sT0}
v_bfe_u32 v156, v0, 4, 1
v_bfe_u32 v157, v0, 1, 1
v_lshl_add_u32 v156, v156, 1, v157
v_bfe_u32 v157, v0, 3, 1
v_xor_b32 v156, v156, v157
v_lshl_add_u32 v{vKR}, v156, 4, v{vKR}
v_and_b32 v156, 1, v0
v_lshl_add_u32 v{vKR}, v156, 3, v{vKR}
""")
vKW2, vKR2 = 128, 129
a(f"v_xor_b32 v{vKR2}, 32, v{vKR}")
def kwrite(chunk, stg):
    if chunk == 0: ad = vKW
    else:
        a(f"v_xor_b32 v{vKW2}, {chunk*16}, v{vKW}"); ad = vKW2
    a(f"ds_write_b128 v{ad}, {v(stg,4)}\nds_write_b128 v{ad}, {v(stg+4,4)} offset:4096")
def kread(dst):
    for k in range(8):
        a(f"ds_read_b64_tr_b16 {v(dst+4*k,2)}, v{vKR} offset:{1024*k}")
        a(f"ds_read_b64_tr_b16 {v(dst+4*k+2,2)}, v{vKR2} offset:{1024*k+256}")
extra = [[(E4, E2, E2, False)], [(PX[1], PX[0], E1, False)], [(PX[2], PX[0], E2, False)], [(PX[3], PX[1], E2, False)],
         [(PX[4], PX[0], E4, False)], [(PX[5], PX[1], E4, False)], [(PX[6], PX[2], E4, False)], [(PX[7], PX[3], E4, False)],
         [(PX[8], PX[0], WC, True)]]
for i in range(16):
    st = STG[(i//4) % 2]
    a(f"v_cvt_pk_bf16_f32 v{st+i%4}, v{BE}, v{BO}\nv_cvt_pk_bf16_f32 v{st+4+i%4}, v{BE+1}, v{BO+1}")
    grp = [(BE, BE, W2, False)] + ([(BO, BO, W2, False)] if i < 15 else []) + (extra[i] if i < len(extra) else [])
    cmuls(grp, TT)
    if i % 4 == 3: kwrite(i//4, st)
kread(BFR)
Q = BE
def apack(st, rows):
    for i in range(4):
        x, y = rows[2*i], rows[2*i+1]
        a(f"v_cvt_pk_bf16_f32 v{st+i}, v{x}, v{y}\nv_cvt_pk_bf16_f32 v{st+4+i}, v{x+1}, v{y+1}")
apack(STG[0], [PX[i] for i in range(8)])
cmuls([(PX[x], PX[x], Q, True) for x in (0, 2, 4, 6, 8)], TT)
kwrite(0, STG[0])
apack(STG[1], [PX[x] for x in (0, 0, 2, 4, 4, 4, 6, 8)])
cmuls([(PX[x], PX[x], Q, True) for x in (0, 4, 8)], TT)
kwrite(1, STG[1])
cmuls([(PX[y], PX[x], Q, True) for x, y in ((0, 1), (4, 5), (8, 7))], TT)
apack(STG[0], [PX[0], PX[4], PX[8], PX[8], PX[1], PX[5], PX[7], PX[7]])
cmuls([(PX[0], PX[1], Q, True), (PX[8], PX[7], Q, True)], TT)
kwrite(2, STG[0])
cmuls([(PX[1], PX[0], Q, True), (PX[7], PX[8], Q, True)], TT)
cmuls([(PX[2], PX[1], Q, True), (PX[3], PX[7], Q, True)], TT)
cmuls([(PX[4], PX[2], Q, True), (PX[5], PX[3], Q, True)], TT)
apack(STG[1], [PX[0], PX[8], PX[1], PX[7], PX[2], PX[3], PX[4], PX[5]])
kwrite(3, STG[1])
kread(AFR)
for k in range(8):
    a(f"s_waitcnt lgkmcnt({min(15, 14-2*k)})")
    a(f"v_mfma_f32_32x32x16_bf16 {v(DACC,16)}, {v(AFR+4*k,4)}, {v(BFR+4*k,4)}, {v(DACC,16) if k else 0}")
a(f"v_lshl_add_u32 v{vKW}, v0, 4, s{sT0}")
for q in range(4):
    a(f"ds_write_b128 v{vKW}, {v(DACC+4*q,4)} offset:{1024*q}")
a(f"""s_cmp_lt_u32 s{sW}, 4
s_cbranch_scc0 L_side
""")

vZ = 16; vNV = 17
a(f"v_mov_b32 v{vZ}, 0")
nonce_issue(vNV, vZ)
stamp(2, VP)
a("s_waitcnt lgkmcnt(0)")

def g1_reads(st, kap, xoff, woff):
    return [f"ds_read_b64_tr_b16 {v(st+8,2)}, v{vWA} offset:{woff + kap*2048}",
            f"ds_read_b64_tr_b16 {v(st+10,2)}, v{vWA} offset:{woff + kap*2048 + 512}",
            f"ds_read_b128 {v(st,4)}, v{vXA+kap} offset:{xoff}",
            f"ds_read_b128 {v(st+4,4)}, v{vXA+kap} offset:{xoff + 4096}",
            f"ds_read_b64_tr_b16 {v(st+12,2)}, v{vWA} offset:{woff + kap*2048 + 8192}",
            f"ds_read_b64_tr_b16 {v(st+14,2)}, v{vWA} offset:{woff + kap*2048 + 8192 + 512}"]
def g1_mfma(st, acc, first=False):
    out = []
    for (wo, xo, ao) in ((8, 0, 0), (8, 4, 16), (12, 0, 32), (12, 4, 48)):
        out.append(f"v_mfma_f32_32x32x16_bf16 {v(acc+ao,16)}, {v(st+wo,4)}, {v(st+xo,4)}, {0 if first else v(acc+ao,16)}")
    return out
def g1_step(reads, mf, fill, drained):
    def fl(n):
        for _ in range(n):
            if fill: a(fill.pop(0))
    if not drained: a("s_waitcnt lgkmcnt(3)")
    a(mf[0]); a(reads[0]); a(reads[1]); a(reads[2])
    if not drained: a("s_waitcnt lgkmcnt(5)")
    a(mf[1]); a(reads[3]); a(reads[4]); a(reads[5])
    if not drained: a("s_waitcnt lgkmcnt(6)")
    a(mf[2]); fl(FILLN)
    a(mf[3]); fl(FILLN)
FILLN = 4

sIT = 94; sRG = 95
a(f"s_mov_b32 s{sIT}, 7\ns_mov_b32 s{sRG}, 0")
p0 = a.pos()
a("L_passA:\ns_barrier")
for kap in range(4):
    st_r = F0 if kap % 2 == 0 else F1
    st_m = F1 if kap % 2 == 0 else F0
    fill = []
    if kap == 3:
        fill = [f"v_add_u32 v{vXA+i}, {UNIT}, v{vXA+i}" for i in range(4)] + \
               [f"s_add_u32 s{sRG}, s{sRG}, 1\ns_cmp_eq_u32 s{sRG}, 3\ns_cselect_b32 s{sT0}, {(-2*UNIT) & 0xffffffff}, {UNIT}".replace(str(UNIT), f"s{sT1}", 1) if False else
                f"s_add_u32 s{sRG}, s{sRG}, 1\ns_cmp_eq_u32 s{sRG}, 3\ns_cselect_b32 s{sRG}, 0, s{sRG}\ns_cselect_b32 s{sT0}, -2, 1\ns_lshl_b32 s{sT0}, s{sT0}, 14",
                f"v_add_u32 v{vWA}, s{sT0}, v{vWA}", f"s_sub_u32 s{sIT}, s{sIT}, 1\ns_cmp_lg_u32 s{sIT}, 0"]
    g1_step(g1_reads(st_r, kap, 0, 0), g1_mfma(st_m, ACA), fill, kap == 0)
    assert not fill
a("s_waitcnt lgkmcnt(0)\ns_cbranch_scc1 L_passA")
a.check_backedge(p0, a.pos())
stamp(3, VP)
for i in range(4): a(f"v_add_u32 v{vXA+i}, {(-7*UNIT) & 0xffffffff}, v{vXA+i}")
a(f"v_add_u32 v{vWA}, {(-UNIT) & 0xffffffff}, v{vWA}")
a("s_waitcnt vmcnt(0)")
nonce_check(vNV, vZ)
sHS, sFS = 96, 97
a(f"""v_mov_b32 v{vNV}, s{sNON}
s_and_b32 s{sT0}, s{sW4}, 1
s_lshl_b32 s{sT1}, s{sLB}, 1
s_add_u32 s{sT0}, s{sT0}, s{sT1}
s_mul_i32 s{sT0}, s{sT0}, 14
s_add_u32 s{sT0}, s{sT0}, s{sFB}
s_lshl_b32 s{sT0}, s{sT0}, 2
s_lshr_b32 s{sT1}, s{sW4}, 1
s_add_u32 s{sT0}, s{sT0}, s{sT1}
s_lshl_b32 s{sHS}, s{sT0}, 12
s_add_u32 s{sHS}, s{sHS}, {WS_H}
s_lshl_b32 s{sFS}, s{sT0}, 8
s_add_u32 s{sFS}, s{sFS}, {WS_FLAGH}
""")
ET = 192
def epilogue(acc):
    out = []
    gi = 0
    for jf in range(2):
        for nb in range(2):
            G = acc + 16*nb + 8*jf; U = G + 32
            pk = ET + 4*gi
            for half in range(2):
                e = [4*half + i for i in range(4)]
                t = [18 + 4*half + i for i in range(4)]
                out += [f"v_mul_f32 v{t[i]}, s{sNL2E}, v{G+e[i]}" for i in range(4)]
                out += [f"v_exp_f32 v{t[i]}, v{t[i]}" for i in range(4)]
                out += [f"v_add_f32 v{t[i]}, 1.0, v{t[i]}" for i in range(4)]
                out += [f"v_rcp_f32 v{t[i]}, v{t[i]}" for i in range(4)]
                out += [f"v_mul_f32 v{t[i]}, v{t[i]}, v{U+e[i]}" for i in range(4)]
                out += [f"v_cvt_pk_bf16_f32 v{pk+2*half+i}, v{t[2*i]}, v{t[2*i+1]}" for i in range(2)]
            out.append(f"buffer_store_dwordx4 {v(pk,4)}, v{vL16}, {s(R_WS,4)}, s{sHS} offen offset:{jf*2048 + nb*1024} sc1")
            gi += 1
    return out
epiA = epilogue(ACA)
flagA_done = False
for it in range(7):
    g = 7 + it
    if it == 4:
        for i in range(4): a(f"v_add_u32 v{vXA+i}, {4*UNIT}, v{vXA+i}")
    a("s_barrier")
    for kap in range(4):
        st_r = F0 if kap % 2 == 0 else F1
        st_m = F1 if kap % 2 == 0 else F0
        first_step = (it == 0 and kap == 0)
        mf = g1_mfma(st_m, ACA if first_step else ACB, first=(it == 0 and kap == 1))
        fill = epiA if not (it == 0 and kap < 2) else []
        g1_step(g1_reads(st_r, kap, (it % 4)*UNIT, (g % 3)*UNIT), mf, fill, kap == 0)
    a("s_waitcnt lgkmcnt(0)")
assert not epiA, len(epiA)
vONE = 26; vCN = 27
a(f"v_mov_b32 v{vONE}, 1\nv_mov_b32 v{vCN}, {CNT}")
mf = g1_mfma(F1, ACB)
a(mf[0]); a(f"ds_add_u32 v{vCN}, v{vONE}")
a(mf[1]); a("s_waitcnt vmcnt(0)")
a(f"buffer_store_dword v{vNV}, v{vFLG}, {s(R_WS,4)}, s{sFS} offen sc1")
a(mf[2]); a(f"s_add_u32 s{sHS}, s{sHS}, 8192"); a(mf[3])
stamp(4, VP)
epiB = epilogue(ACB)
vPR = 28
nq = len(epiB) * 3 // 4
for x in epiB[:nq]: a(x)
a(f"buffer_load_dword v{vPR}, v{vPOL}, {s(R_WS,4)}, 0 offen sc1")
for x in epiB[nq:]: a(x)
stamp(5, VP)
L = a.label("cnt"); E = a.label("cntend")
a(f"""s_mov_b32 s{sCNT}, {SPIN*8}
{L}:
ds_read_b32 v29, v{vCN}
s_waitcnt lgkmcnt(0)
v_readfirstlane_b32 s{sT0}, v29
s_cmp_ge_u32 s{sT0}, 512
s_cbranch_scc1 {E}
s_sub_u32 s{sCNT}, s{sCNT}, 1
s_cmp_lg_u32 s{sCNT}, 0
s_cbranch_scc1 {L}
{E}:""")
dma_wd(6); dma_wd(7)
a("s_waitcnt vmcnt(9)")
check_or_poll(vPR, vPOL, "0")
stamp(6, VP)
HF = [64 + 16*i for i in range(4)] + [208 + 16*i for i in range(3)]
sHL = 98
a(f"""s_mul_i32 s{sHL}, s{sT2}, 14
s_lshr_b32 s{sT0}, s{sW4}, 1
s_mul_i32 s{sT0}, s{sT0}, 7
s_add_u32 s{sHL}, s{sHL}, s{sT0}
s_lshl_b32 s{sHL}, s{sHL}, 2
s_and_b32 s{sT0}, s{sW4}, 1
s_add_u32 s{sHL}, s{sHL}, s{sT0}
s_lshl_b32 s{sHL}, s{sHL}, 12
s_add_u32 s{sHL}, s{sHL}, {WS_H}
""")
def h_loads(i7):
    a(f"s_lshl_b32 s{sT0}, s{sPI+i7}, 14\ns_add_u32 s{sT0}, s{sT0}, s{sHL}")
    for i in range(4):
        a(f"buffer_load_dwordx4 {v(HF[i7]+4*i,4)}, v{vL16}, {s(R_WS,4)}, s{sT0} offen offset:{1024*i} sc1")
h_loads(0); h_loads(1)
a(f"s_waitcnt vmcnt(16)\nbuffer_store_dword v{vNV}, v{vFLG}, {s(R_WS,4)}, s{sFS} offen offset:512 sc1")
for i in range(2, 7): h_loads(i)
AC2 = 128
def g2_reads(st, n, ks):
    u = UNIT_OF[n]; hi = u // 4; off = (u % 4)*UNIT + ks*2048
    return [f"ds_read_b64_tr_b16 {v(st+4*mb+2*sec,2)}, v{vWB+2*hi+mb} offset:{off + sec*1024}" for mb in range(2) for sec in range(2)]
def g2_half(p, queue):
    def wait_for(tag):
        idx = max(i for i, t in enumerate(queue) if t == tag) if tag in queue else -1
        if idx >= 0:
            n = len(queue) - 1 - idx
            a(f"s_waitcnt vmcnt({n})")
            del queue[:idx+1]
    steps = [(7*p + i7, ks) for i7 in range(7) for ks in range(2)]
    wait_for(("wd", steps[0][0]))
    for x in g2_reads(F0, *steps[0]): a(x)
    for si, (n, ks) in enumerate(steps):
        st = F0 + 8*(si % 2); st2 = F0 + 8*((si+1) % 2)
        nxt = []
        if si + 1 < len(steps):
            wait_for(("wd", steps[si+1][0]))
            nxt = g2_reads(st2, *steps[si+1])
        wait_for(("h", n % 7, ks))
        a("s_waitcnt lgkmcnt(0)")
        dm = []
        if p == 0 and ks == 1 and n + 8 < 14:
            dm = dma_wd_list(n + 8)
        k = 0
        for mb in range(2):
            for nb in range(2):
                acc = AC2 + 32*mb + 16*nb
                first = (p == 0 and si == 0)
                a(f"v_mfma_f32_32x32x16_bf16 {v(acc,16)}, {v(st+4*mb,4)}, {v(HF[n%7]+8*ks+4*nb,4)}, {0 if first else v(acc,16)}")
                if k < 2 and nxt: a(nxt[2*k]); a(nxt[2*k+1])
                if dm: a(dm[k]); queue.append(("wd", n + 8))
                k += 1
queue = [("wd", 6)]*4 + [("wd", 7)]*4
def hq(i): return [("h", i, 0)]*2 + [("h", i, 1)]*2
queue += hq(0) + hq(1) + ["flag"]
for i in range(2, 7): queue += hq(i)
g2_half(0, queue)
stamp(7, VP)
a(f"s_movk_i32 s{sT1}, 512")
poll(vPR, vPOL, f"s{sT1}")
stamp(8, VP)
a(f"s_add_u32 s{sHL}, s{sHL}, 8192")
queue = []
for i in range(7): h_loads(i); queue += hq(i)
g2_half(1, queue)
stamp(9, VP)
a(f"""v_and_b32 v18, 15, v0
v_lshlrev_b32 v18, 8, v18
v_bfe_u32 v19, v0, 4, 1
v_lshl_add_u32 v18, v19, 14, v18
s_add_u32 s{sT0}, s{sWK4}, {5*UNIT}
v_add_u32 v18, s{sT0}, v18
v_lshrrev_b32 v19, 5, v0
v_and_b32 v20, 7, v0
v_xor_b32 v19, v19, v20
v_lshl_add_u32 v18, v19, 4, v18
v_xor_b32 v19, 32, v18
v_xor_b32 v20, 64, v18
v_xor_b32 v21, 96, v18
""")
for mb in range(2):
    for nb in range(2):
        for vq in range(4):
            a(f"ds_write_b128 v{18+vq}, {v(AC2+32*mb+16*nb+4*vq,4)} offset:{mb*128 + nb*32768}")
a("s_branch L_final")

a("L_side:")
stamp(2, VP)
a("s_waitcnt vmcnt(16) lgkmcnt(0)\ns_barrier")
PKD = 16
a(f"""s_lshl_b32 s{sT0}, s{sCH}, 14
s_and_b32 s{sT1}, s{sW}, 1
s_lshl_b32 s{sT1}, s{sT1}, 11
s_add_u32 s{sT0}, s{sT0}, s{sT1}
s_add_u32 s{sT0}, s{sT0}, {SCR}
v_lshl_add_u32 v30, v0, 4, s{sT0}
""")
for i, wo in enumerate([0, 8192, 32768, 40960]):
    for q in range(2):
        a(f"ds_read_b128 {v(64+8*i+4*q,4)}, v30 offset:{wo + 1024*q}")
vZ = 28; vNV = 29
a(f"v_mov_b32 v{vZ}, 0\ns_waitcnt lgkmcnt(0)")
for e in range(8): a(f"v_add_f32 v{64+e}, v{64+e}, v{72+e}\nv_add_f32 v{80+e}, v{80+e}, v{88+e}")
for e in range(8): a(f"v_add_f32 v{64+e}, v{64+e}, v{80+e}")
a(f"""s_bitcmp1_b32 s{sW}, 0
s_cbranch_scc1 L_pack_hi
s_lshl_b32 s{sT0}, s{sDSK}, 16
s_and_b32 s{sT1}, s{sDSK}, 0xffff0000
s_cmp_eq_u32 s{sCH}, 0
s_cselect_b32 s{sT0}, s{sT0}, s{sT1}
s_mov_b64 exec, 1
v_add_f32 v64, s{sT0}, v64
s_mov_b64 exec, -1
v_cvt_pk_bf16_f32 v{PKD}, v64, v65
v_cvt_pk_bf16_f32 v{PKD+1}, v66, v67
v_cvt_pk_bf16_f32 v{PKD+2}, v68, v69
v_cvt_pk_bf16_f32 v{PKD+3}, v70, v71
s_branch L_pack_done
L_pack_hi:
v_cvt_pk_bf16_f32 v{PKD}, v64, v64
v_cvt_pk_bf16_f32 v{PKD+1}, v64, v65
v_cvt_pk_bf16_f32 v{PKD+2}, v65, v65
v_cvt_pk_bf16_f32 v{PKD+3}, v66, v66
v_cvt_pk_bf16_f32 v{PKD+4}, v68, v68
v_cvt_pk_bf16_f32 v{PKD+5}, v68, v68
v_cvt_pk_bf16_f32 v{PKD+6}, v68, v69
v_cvt_pk_bf16_f32 v{PKD+7}, v69, v69
v_cvt_pk_bf16_f32 v{PKD+8}, v70, v70
v_cvt_pk_bf16_f32 v{PKD+9}, v70, v70
v_cvt_pk_bf16_f32 v{PKD+10}, v70, v71
v_cvt_pk_bf16_f32 v{PKD+11}, v71, v71
s_mov_b32 exec_lo, 0xaaaaaaaa
s_mov_b32 exec_hi, 0xaaaaaaaa
v_mov_b32 v{PKD+6}, v{PKD+7}
v_mov_b32 v{PKD+10}, v{PKD+11}
s_mov_b64 exec, -1
L_pack_done:
s_waitcnt vmcnt(8)
s_barrier
""")
vUP, vUO, UDAT = 3, 4, 32
prev = 8
for g in range(1, 13):
    n = 0
    if g == 2:
        nonce_issue(vNV, vZ); n += 1
    if g == 6:
        a(f"v_and_b32 v{vUP}, 31, v0\nv_lshlrev_b32 v{vUP}, 8, v{vUP}\nv_add_u32 v{vUP}, {WS_FLAGU}, v{vUP}")
        a(f"buffer_load_dword v30, v{vUP}, {s(R_WS,4)}, 0 offen sc1"); n += 1
    if g + 2 <= 6: n += dma_x(g + 2)
    if g + 2 <= 13: n += dma_w(g + 2)
    if g in (8, 9, 10): n += dma_wd(g - 8)
    if g == 12: n += dma_wd(3)
    if g == 4:
        nonce_check(vNV, vZ)
        a(f"v_mov_b32 v{vNV}, s{sNON}")
    if g == 8:
        check_or_poll(30, vUP, "0")
        a(f"""v_lshrrev_b32 v{vUO}, 1, v0
v_mul_u32_u24 v{vUO}, 7168, v{vUO}
v_and_b32 v30, 1, v0
v_lshl_add_u32 v{vUO}, v30, 4, v{vUO}
s_mul_i32 s{sT0}, s{sW4}, {64*7168}
s_lshl_b32 s{sT1}, s{sPAIR}, 5
s_add_u32 s{sT0}, s{sT0}, s{sT1}
s_add_u32 s{sT0}, s{sT0}, {WS_UT}
s_add_u32 s{sT1}, s{sT0}, {32*7168}
buffer_load_dwordx4 {v(UDAT,4)}, v{vUO}, {s(R_WS,4)}, s{sT0} offen sc1
buffer_load_dwordx4 {v(UDAT+4,4)}, v{vUO}, {s(R_WS,4)}, s{sT1} offen sc1
"""); n += 2
    if g == 12:
        for r in range(40, 44): a(f"v_mov_b32 v{r}, 0")
        a(f"""v_lshrrev_b32 v44, 3, v0
v_and_b32 v45, 7, v0
v_mul_u32_u24 v46, {RS}, v44
v_lshl_add_u32 v46, v45, 4, v46
v_add_u32 v46, {UB}, v46
v_lshrrev_b32 v47, 5, v0
v_mul_u32_u24 v47, {KS}, v47
v_and_b32 v44, 3, v44
v_lshl_add_u32 v47, v44, 4, v47
v_add_u32 v47, {KB}, v47
v_cmp_eq_u32 vcc, 7, v45
v_cndmask_b32 v46, v46, v47, vcc
ds_write_b128 v46, v[40:43]
v_lshlrev_b32 v46, 3, v0
s_lshl_b32 s{sT0}, s{sW4}, 9
s_add_u32 s{sT0}, s{sT0}, {XCH}
v_add_u32 v46, s{sT0}, v46
ds_write_b64 v46, v[40:41]
v_mov_b32 v46, {CNT}
ds_write_b32 v46, v40
v_and_b32 v44, 1, v0
v_bfe_u32 v45, v0, 2, 2
v_lshl_add_u32 v44, v44, 2, v45
v_mul_u32_u24 v44, {RS}, v44
v_lshrrev_b32 v45, 4, v0
v_lshl_add_u32 v44, v45, 5, v44
v_bfe_u32 v45, v0, 1, 1
v_lshl_add_u32 v44, v45, 4, v44
s_lshl_b32 s{sT0}, s{sW4}, 8
s_add_u32 s{sT0}, s{sT0}, {UB + 112}
v_add_u32 v44, s{sT0}, v44
ds_write_b128 v44, {v(UDAT,4)}
ds_write_b128 v44, {v(UDAT+4,4)} offset:128
; K
s_mul_i32 s{sT0}, s{sCH}, {KS}
s_add_u32 s{sT0}, s{sT0}, {KB + 64}
v_and_b32 v44, 31, v0
v_lshl_add_u32 v44, v44, 4, s{sT0}
v_lshrrev_b32 v45, 5, v0
s_bitcmp1_b32 s{sW}, 0
s_cbranch_scc1 L_kw_hi
v_lshl_add_u32 v44, v45, 3, v44
ds_write_b64 v44, {v(PKD,2)}
ds_write_b64 v44, {v(PKD+2,2)} offset:512
s_branch L_kw_done
L_kw_hi:
v_lshl_add_u32 v46, v45, 9, v44
v_lshl_add_u32 v47, v45, 10, v44
ds_write_b128 v46, {v(PKD,4)} offset:1024
ds_write_b128 v47, {v(PKD+4,4)} offset:2048
ds_write_b128 v47, {v(PKD+8,4)} offset:2560
L_kw_done:
""")
    a(f"s_waitcnt vmcnt({n}) lgkmcnt(0)\ns_barrier")
stamp(3, VP)
dma_wd(4); dma_wd(5)
if DUMPK:
    a(f"""s_mul_i32 s{sT0}, s{sCH}, {KS}
s_and_b32 s{sT1}, s{sW}, 1
s_lshl_b32 s{sT1}, s{sT1}, 11
s_add_u32 s{sT0}, s{sT0}, s{sT1}
s_add_u32 s{sT0}, s{sT0}, {KB + 64}
v_lshl_add_u32 v44, v0, 4, s{sT0}
ds_read_b128 v[48:51], v44
ds_read_b128 v[52:55], v44 offset:1024
s_lshl_b32 s{sT0}, s{sPAIR}, 1
s_add_u32 s{sT0}, s{sT0}, s{sCH}
s_lshl_b32 s{sT0}, s{sT0}, 12
s_add_u32 s{sT0}, s{sT0}, s{sT1}
s_add_u32 s{sT0}, s{sT0}, {WS_DBG}
v_lshlrev_b32 v44, 4, v0
s_waitcnt lgkmcnt(0)
buffer_store_dwordx4 v[48:51], v44, {s(R_WS,4)}, s{sT0} offen
buffer_store_dwordx4 v[52:55], v44, {s(R_WS,4)}, s{sT0} offen offset:1024
""")
vUA, vKA = 3, 4
a(f"""v_and_b32 v44, 3, v0
v_mul_u32_u24 v44, {RS}, v44
v_bfe_u32 v45, v0, 2, 3
v_lshrrev_b32 v46, 5, v0
v_add_u32 v45, v45, v46
v_lshl_add_u32 v44, v45, 4, v44
s_mul_i32 s{sT0}, s{sCH}, {4*RS}
s_add_u32 s{sT0}, s{sT0}, {UB}
v_add_u32 v{vUA}, s{sT0}, v44
v_bfe_u32 v44, v0, 4, 1
v_lshlrev_b32 v44, 2, v44
v_and_b32 v45, 3, v0
v_add_u32 v44, v44, v45
v_bfe_u32 v45, v0, 2, 2
v_sub_u32 v44, v44, v45
v_lshlrev_b32 v46, 3, v46
v_sub_u32 v44, v44, v46
s_mul_i32 s{sT0}, s{sCH}, {KS}
s_add_u32 s{sT0}, s{sT0}, {KB + 96}
v_lshl_add_u32 v{vKA}, v44, 3, s{sT0}
v_mov_b32 v5, 1
v_mov_b32 v6, {CNT}
s_bitcmp1_b32 s{sW}, 0
s_cbranch_scc1 L_conv1
""")
CA = 64; US = [128, 160]; KSr = [192, 224]
def conv(blocks, tag):
    bmax = max(blocks)
    pairs = sorted([(b - t, t, bi) for bi, b in enumerate(blocks) for t in range(b + 1)], key=lambda x: (max(x[0], x[1]), x[2]))
    def reads(rp):
        out = []
        for i in range(bmax + 1):
            out.append(f"ds_read_b128 {v(US[rp%2]+4*i,4)}, v{vUA} offset:{128*i - 32*rp + 96}")
            t = rp + 4*i
            out.append(f"ds_read_b64_tr_b16 {v(KSr[rp%2]+4*i,2)}, v{vKA} offset:{32 + 128*t}")
            out.append(f"ds_read_b64_tr_b16 {v(KSr[rp%2]+4*i+2,2)}, v{vKA} offset:{128*t}")
        return out
    for x in reads(0): a(x)
    seen = set()
    for rp in range(4):
        nxt = reads(rp + 1) if rp < 3 else []
        a("s_waitcnt lgkmcnt(0)")
        if rp == 1:
            a("s_waitcnt vmcnt(0)\nds_add_u32 v6, v5")
        for (sg, t, bi) in pairs:
            acc = CA + 16*bi
            a(f"v_mfma_f32_32x32x16_bf16 {v(acc,16)}, {v(US[rp%2]+4*sg,4)}, {v(KSr[rp%2]+4*t,4)}, {v(acc,16) if bi in seen else 0}")
            seen.add(bi)
            for _ in range(2):
                if nxt: a(nxt.pop(0))
        assert not nxt
    stamp(4, VP)
    runs = []
    for bi, b in enumerate(blocks):
        if runs and blocks[runs[-1][-1]] == b - 1: runs[-1].append(bi)
        else: runs.append([bi])
    OV = [40, 41]
    outr = [r for r in runs if blocks[r[-1]] < 7]
    inr = [r for r in runs if blocks[r[0]] > 0]
    assert len(outr) == 2 and len(inr) == 2
    a(f"v_mov_b32 v40, 0\nv_mov_b32 v41, 0\ns_mov_b32 s{sEX}, 0")
    for r in (3, 2, 1):
        a("s_mov_b32 exec_lo, 0\ns_mov_b32 exec_hi, 0x80000000")
        for run in runs:
            regs = [CA + 16*bi + 4*q + r for bi in run for q in range(4)]
            if run in outr: a(f"v_mov_b32 v{OV[outr.index(run)]}, v{regs[-1]}")
            for i in range(len(regs) - 1, 0, -1): a(f"v_mov_b32 v{regs[i]}, v{regs[i-1]}")
            a(f"v_mov_b32 v{regs[0]}, 0")
        a("s_mov_b64 exec, -1")
        for o in OV: a(f"v_mov_b32_dpp v{o}, v{o} wave_ror:1 row_mask:0xf bank_mask:0xf")
        if r == 1:
            a(f"""s_mov_b32 exec_lo, 0
s_mov_b32 exec_hi, 0x80000000
v_mov_b32 v40, 1.0
v_mov_b32 v41, 1.0
s_mov_b64 exec, -1
s_lshl_b32 s{sT0}, s{sW4}, 9
s_add_u32 s{sT0}, s{sT0}, {XCH}
v_add_u32 v42, s{sT0}, v{vFLG}
ds_write_b32 v42, v40
ds_write_b32 v42, v41 offset:256
v_xor_b32 v42, 512, v42
""")
        for bi in range(4):
            for q in range(4):
                x = CA + 16*bi + 4*q + r
                a(f"v_add_f32_dpp v{x-1}, v{x}, v{x-1} wave_ror:1 row_mask:0xf bank_mask:0xf")
    L = a.label("xch"); E = a.label("xchend")
    a(f"""s_mov_b32 s{sCNT}, {SPIN*8}
{L}:
ds_read_b32 v40, v42
ds_read_b32 v41, v42 offset:256
s_waitcnt lgkmcnt(0)
v_readlane_b32 s{sT0}, v40, 63
v_readlane_b32 s{sT1}, v41, 63
s_and_b32 s{sT0}, s{sT0}, s{sT1}
s_cbranch_scc1 {E}
s_sub_u32 s{sCNT}, s{sCNT}, 1
s_cmp_lg_u32 s{sCNT}, 0
s_cbranch_scc1 {L}
{E}:
s_mov_b64 exec, 7
v_add_f32 v{CA+16*inr[0][0]}, v40, v{CA+16*inr[0][0]}
v_add_f32 v{CA+16*inr[1][0]}, v41, v{CA+16*inr[1][0]}
s_mov_b64 exec, -1
s_lshl_b32 s{sT0}, s{sPAIR}, 1
s_add_u32 s{sT0}, s{sT0}, s{sCH}
s_lshl_b32 s{sT0}, s{sT0}, 9
v_lshlrev_b32 v42, 3, v0
""")
    for bi, b in enumerate(blocks):
        x = CA + 16*bi
        a(f"v_cvt_pk_bf16_f32 v{44+2*bi}, v{x}, v{x+4}\nv_cvt_pk_bf16_f32 v{45+2*bi}, v{x+8}, v{x+12}")
        a(f"s_add_u32 s{sT1}, s{sT0}, {WS_AT + b*448*512}")
        a(f"buffer_store_dwordx2 {v(44+2*bi,2)}, v42, {s(R_WS,4)}, s{sT1} offen sc1")
conv([0, 3, 4, 7], "0")
a("s_branch L_convdone\nL_conv1:")
conv([1, 2, 5, 6], "1")
a(f"""L_convdone:
s_and_b32 s{sT1}, s{sW}, 1
s_lshl_b32 s{sT1}, s{sT1}, 8
s_add_u32 s{sT0}, s{sT0}, s{sT1}
s_add_u32 s{sT0}, s{sT0}, {WS_FLAGA}
v_and_b32 v44, 3, v0
v_lshlrev_b32 v44, 6, v44
v_lshrrev_b32 v45, 2, v0
v_add_lshl_u32 v44, v44, v45, 2
s_lshl_b32 s{sT1}, s{sX}, 10
s_lshl_b32 s{sT3}, s{sJQ}, 6
s_add_u32 s{sT1}, s{sT1}, s{sT3}
s_add_u32 s{sT1}, s{sT1}, {WS_G}
buffer_load_dword v46, v44, {s(R_WS,4)}, s{sT1} offen sc1
s_waitcnt vmcnt(0)
buffer_store_dword v{vNV}, v{vFLG}, {s(R_WS,4)}, s{sT0} offen sc1
v_add_u32 v44, {GL}, v{vFLG}
ds_write_b32 v44, v46
""")
stamp(5, VP)
a(f"""; poll a flags: d = 64db + 16w + (lane&15); set = ((x+1)>>1)&1
v_and_b32 v44, 15, v0
v_lshlrev_b32 v44, 9, v44
s_lshl_b32 s{sT0}, s{sJR}, 6
s_lshl_b32 s{sT1}, s{sW4}, 4
s_add_u32 s{sT0}, s{sT0}, s{sT1}
s_lshl_b32 s{sT0}, s{sT0}, 9
s_add_u32 s{sT1}, s{sX}, 1
s_lshl_b32 s{sT1}, s{sT1}, 7
s_and_b32 s{sT1}, s{sT1}, 256
s_add_u32 s{sT1}, s{sT1}, s{sT0}
s_add_u32 s{sT1}, s{sT1}, {WS_FLAGA}
v_lshrrev_b32 v47, 3, v0
v_and_b32 v48, 7, v0
v_lshlrev_b32 v49, 9, v47
v_lshl_add_u32 v49, v48, 4, v49
s_mul_i32 s{sT3}, s{sX}, {448*512}
s_add_u32 s{sT0}, s{sT0}, s{sT3}
s_lshl_b32 s{sT3}, s{sJQ}, 7
s_add_u32 s{sT0}, s{sT0}, s{sT3}
s_add_u32 s{sT0}, s{sT0}, {WS_AT}
s_add_u32 s{sT3}, s{sT0}, 4096
s_lshl_b32 s{sT2_}, s{sW4}, 1
v_xor_b32 v50, s{sT2_}, v48
v_lshlrev_b32 v50, 4, v50
v_lshl_add_u32 v50, v48, 10, v50
v_lshl_add_u32 v50, v47, 1, v50
v_add_u32 v50, {ATL}, v50
v_xor_b32 v51, 16, v50
""")
poll(45, 44, f"s{sT1}")
stamp(6, VP)
a(f"""buffer_load_dwordx4 v[52:55], v49, {s(R_WS,4)}, s{sT0} offen sc1
buffer_load_dwordx4 v[56:59], v49, {s(R_WS,4)}, s{sT3} offen sc1
""")
for i in range(2):
    a(f"s_waitcnt vmcnt({1-i})")
    for e in range(8):
        a(f"ds_write_b16{'_d16_hi' if e % 2 else ''} v{50+i}, v{52+4*i+e//2} offset:{128*e}")

a(f"""L_final:
v_lshrrev_b32 v17, 3, v0
v_and_b32 v18, 7, v0
s_lshr_b32 s{sT0}, s{sW}, 1
s_lshl_b32 s{sT0}, s{sT0}, 14
s_and_b32 s{sT1}, s{sW}, 1
s_lshl_b32 s{sT1}, s{sT1}, 11
s_add_u32 s{sT0}, s{sT0}, s{sT1}
s_add_u32 s{sT0}, s{sT0}, {5*UNIT}
v_lshlrev_b32 v22, 1, v18
v_xor_b32 v22, v22, v17
v_lshlrev_b32 v22, 4, v22
v_lshl_add_u32 v22, v17, 8, v22
v_add_u32 v22, s{sT0}, v22
v_xor_b32 v23, 16, v22
v_xor_b32 v24, s{sW}, v18
v_lshlrev_b32 v24, 4, v24
v_lshl_add_u32 v24, v17, 7, v24
s_lshl_b32 s{sT0}, s{sW}, 10
s_add_u32 s{sT0}, s{sT0}, {ATL}
v_add_u32 v24, s{sT0}, v24
s_lshl_b32 s{sT0}, s{sW}, 5
s_add_u32 s{sT0}, s{sT0}, {GL}
v_lshl_add_u32 v25, v17, 2, s{sT0}
v_and_b32 v26, 3, v17
v_lshlrev_b32 v26, 6, v26
v_lshrrev_b32 v27, 2, v17
v_add_u32 v26, v26, v27
v_mul_u32_u24 v26, 896, v26
v_lshl_add_u32 v26, v18, 4, v26
s_lshl_b32 s{sT0}, s{sX}, 8
s_lshl_b32 s{sT1}, s{sJQ}, 4
s_add_u32 s{sT0}, s{sT0}, s{sT1}
s_lshl_b32 s{sT1}, s{sW}, 1
s_add_u32 s{sT0}, s{sT0}, s{sT1}
s_mul_i32 s{sT0}, s{sT0}, 896
s_lshl_b32 s{sT1}, s{sJR}, 7
s_add_u32 s{sT0}, s{sT0}, s{sT1}
""")
stamp(10, VP)
a("s_waitcnt lgkmcnt(0)\ns_barrier")
stamp(11, VP)
for w in range(4):
    a(f"ds_read_b128 {v(32+8*w,4)}, v22 offset:{4096*w}\nds_read_b128 {v(36+8*w,4)}, v23 offset:{4096*w}")
a("ds_read_b128 v[64:67], v24\nds_read_b32 v68, v25\ns_waitcnt lgkmcnt(6)")
for e in range(8): a(f"v_add_f32 v{32+e}, v{32+e}, v{40+e}")
a("s_waitcnt lgkmcnt(2)")
for e in range(8): a(f"v_add_f32 v{48+e}, v{48+e}, v{56+e}")
for e in range(8): a(f"v_add_f32 v{32+e}, v{32+e}, v{48+e}")
a("s_waitcnt lgkmcnt(0)")
for e in range(8):
    if e % 2 == 0: a(f"v_lshlrev_b32 v{40+e}, 16, v{64+e//2}")
    else: a(f"v_and_b32 v{40+e}, 0xffff0000, v{64+e//2}")
for e in range(8): a(f"v_sub_f32 v{40+e}, v{40+e}, v{32+e}")
for e in range(8): a(f"v_fmac_f32 v{32+e}, v68, v{40+e}")
for e in range(4): a(f"v_cvt_pk_bf16_f32 v{48+e}, v{32+2*e}, v{33+2*e}")
a(f"buffer_store_dwordx4 v[48:51], v26, {s(R_OUT,4)}, s{sT0} offen")
stamp(12, VP)
dump_stamps(VP)
a("L_exit:\ns_endpgm")

sH = 83
a(f"""L_helper:
s_sub_u32 s{sH}, s2, 224
v_mov_b32 v2, 0
v_lshlrev_b32 v3, 4, v0
v_lshlrev_b32 v7, 2, v0
s_waitcnt lgkmcnt(0)
""")
if PROF: a(f"v_mov_b32 v{VP}, 0")
stamp(0, VP)
srd(R_X, P_U, 2048*896); srd(R_WS, P_WS, WS_USED)
a(f"""s_or_b32 s{sT0}, s{sH}, s{sW}
s_cmp_lg_u32 s{sT0}, 0
s_cbranch_scc1 L_h_non
buffer_load_dword v4, v2, {s(R_WS,4)}, 0 offen sc1
s_waitcnt vmcnt(0)
v_add_u32 v4, 1, v4
v_max_u32 v4, 1, v4
global_store_dword v2, v4, {s(P_DBG,2)} sc1
buffer_store_dword v4, v2, {s(R_WS,4)}, 0 offen sc1
L_h_non:
s_mul_i32 s{sT0}, s{sH}, {64*896}
s_lshl_b32 s{sT1}, s{sW}, 10
s_add_u32 s{sT0}, s{sT0}, s{sT1}
""")
for i in range(7):
    a(f"s_add_u32 m0, s{sT1}, {8192*i}")
    if i: a(f"s_add_u32 s{sT0}, s{sT0}, 8192")
    a(f"buffer_load_dwordx4 v3, {s(R_X,4)}, s{sT0} offen lds")
a(f"v_and_b32 v5, 7, v0\nv_lshlrev_b32 v5, 4, v5")
for i in range(7): a(f"global_load_dwordx4 {v(32+4*i,4)}, v5, {s(P_GW,2)} offset:{128*i}")
a(f"""; tr address: (4*(8half + rho) + r)*896 + (16G + 4c)*2
v_bfe_u32 v8, v0, 2, 2
v_mul_u32_u24 v8, 3584, v8
v_lshrrev_b32 v9, 4, v0
v_lshl_add_u32 v8, v9, 5, v8
v_and_b32 v9, 3, v0
v_lshl_add_u32 v8, v9, 3, v8
s_lshr_b32 s{sT0}, s{sW}, 2
s_mul_i32 s{sT1}, s{sT0}, {32*896}
s_and_b32 s{sT3}, s{sW}, 3
s_mul_i32 s{sT2_}, s{sT3}, 896
s_add_u32 s{sT1}, s{sT1}, s{sT2_}
v_add_u32 v8, s{sT1}, v8
s_lshl_b32 s{sT3}, s{sT3}, 1
s_add_u32 s{sT0}, s{sT0}, s{sT3}
s_lshl_b32 s{sT3}, s{sH}, 3
s_add_u32 s{sT0}, s{sT0}, s{sT3}
s_mul_i32 s{sT0}, s{sT0}, 7168
s_add_u32 s{sT0}, s{sT0}, {WS_UT}
s_add_u32 s{sT3}, s{sT0}, 4096
v_lshrrev_b32 v9, 3, v0
s_lshl_b32 s{sT1}, s{sW}, 3
v_add_u32 v9, s{sT1}, v9
v_mul_u32_u24 v10, 896, v9
v_add_u32 v10, v10, v5
s_waitcnt vmcnt(0)
s_barrier
""")
stamp(1, VP)
nonce_issue(4, 2)
for i in range(7):
    a(f"ds_read_b64_tr_b16 {v(64+4*i,2)}, v8 offset:{128*i}\nds_read_b64_tr_b16 {v(66+4*i,2)}, v8 offset:{128*i + 4*3584}")
a("s_waitcnt lgkmcnt(0)")
for i in range(7): a(f"ds_read_b128 {v(96+4*i,4)}, v10 offset:{128*i}")
for i in range(7):
    a(f"buffer_store_dwordx4 {v(64+4*i,4)}, v3, {s(R_WS,4)}, s{sT0 if i < 4 else sT3} offen offset:{1024*(i%4)} sc1")
a("v_mov_b32 v11, 0\nv_mov_b32 v12, 0\ns_waitcnt lgkmcnt(0)")
for i in range(14):
    a(f"v_dot2_f32_bf16 v11, v{96+2*i}, v{32+2*i}, v11\nv_dot2_f32_bf16 v12, v{97+2*i}, v{33+2*i}, v12")
a(f"""v_add_f32 v11, v11, v12
v_add_f32_dpp v11, v11, v11 quad_perm:[1,0,3,2] row_mask:0xf bank_mask:0xf
v_add_f32_dpp v11, v11, v11 quad_perm:[2,3,0,1] row_mask:0xf bank_mask:0xf
v_add_f32_dpp v11, v11, v11 row_half_mirror row_mask:0xf bank_mask:0xf
v_mul_f32 v11, {f32(-LOG2E)}, v11
v_exp_f32 v11, v11
v_add_f32 v11, 1.0, v11
v_rcp_f32 v11, v11
v_lshlrev_b32 v9, 2, v9
s_lshl_b32 s{sT1}, s{sH}, 8
s_add_u32 s{sT1}, s{sT1}, {WS_G}
buffer_store_dword v11, v9, {s(R_WS,4)}, s{sT1} offen sc1
s_waitcnt vmcnt(0)
s_barrier
s_cmp_lg_u32 s{sW}, 0
s_cbranch_scc1 L_h_end
""")
nonce_check(4, 2)
a(f"""v_mov_b32 v4, s{sNON}
s_lshl_b32 s{sT1}, s{sH}, 8
s_add_u32 s{sT1}, s{sT1}, {WS_FLAGU}
buffer_store_dword v4, v7, {s(R_WS,4)}, s{sT1} offen sc1
L_h_end:
""")
stamp(2, VP)
dump_stamps(VP)
a("s_endpgm")

hdr = open("cdna_kernels/" + NAME + ".s.ref").read().split("; @launch")[0]
txt = hdr + f"""; @launch grid=(256,1,1) block=(512,1,1) lds=163840
.amdgcn_target "amdgcn-amd-amdhsa--gfx950"
.text
.globl {NAME}_kernel
.p2align 8
.type {NAME}_kernel,@function
""" + a.text() + f""".section .rodata,"a"
.p2align 6
.amdhsa_kernel {NAME}_kernel
  .amdhsa_next_free_vgpr 256
  .amdhsa_next_free_sgpr 102
  .amdhsa_accum_offset 256
  .amdhsa_group_segment_fixed_size 0
  .amdhsa_kernarg_size 136
  .amdhsa_user_sgpr_count 2
  .amdhsa_user_sgpr_kernarg_segment_ptr 1
  .amdhsa_system_sgpr_workgroup_id_x 1
.end_amdhsa_kernel
"""
open(OUT, "w").write(txt)
print("wrote", OUT, "instructions:", len(a.ins))
```

```python
import sys, math, struct
from asmlib import Asm, v, s

NAME = "gated_mix__ssm_conv_s4__glu_gated_glu__prompt"
PROF = "--prof" in sys.argv
DUMPK = "--dumpk" in sys.argv
FINE = "--fine" in sys.argv
G2S = "--g2s" in sys.argv
def opt(name, dflt):
    for x in sys.argv:
        if x.startswith("--" + name + "="): return int(x.split("=")[1])
    return dflt
OUT = [a for a in sys.argv[1:] if a.endswith(".s")]
OUT = OUT[0] if OUT else "cdna_kernels/" + NAME + ".s"
TOUCH_WA = opt("twa", 1); TOUCH_WB = opt("twb", 1); HELP_WD = opt("hwd", 2); HELP_MALL = opt("hmall", 0); CODEPF = opt("cpf", 1)
PR_KS = opt("prks", 1)
PR_G1 = opt("prg1", 0)
PR_LD = opt("prld", 0)
PR_CV = opt("prcv", 0)
PR_G2 = opt("prg2", 1)

WS_FLAGU = 0x1000
WS_G = 0x4000
WS_FLAGH = 0x50000
WS_UT = 0x100000
WS_AT = 0x300000
WS_H = 0x700000
WS_DBG = 0xE00000
WS_STAMP = 0x1000000
WS_USED = 0x1200000 if (PROF or DUMPK) else 0xE00000
UNIT = 16384
RING = 7 * UNIT
SCR = 3 * UNIT
SB = 3 * UNIT
RS = 1216
UB = SB
KB = SB + 8 * RS
KS = 4160
XCH = SB + 18432
CNT = XCH + 2048
GL = CNT + 256
ATL = SB + 21504
UNIT_OF = [7, 2, 8, 0, 9, 5, 6, 1, 7, 2, 8, 0, 9, 5]
WUNIT = [7, 8, 9, 7, 8, 9, 7, 8, 9, 7, 8, 0, 9, 1]
SPIN = 4000

sW, sX, sJ, sJQ, sJR, sW4 = 3, 4, 5, 6, 7, 8
sT0, sT1, sT2_, sT3, sCNT, sWK, sWK4 = 9, 10, 11, 12, 13, 14, 15
P_U, P_ARE, P_AIM, P_BRE, P_BIM, P_CRE, P_CIM, P_LDT, P_DSK, P_BX, P_WG, P_WU, P_WD, P_GW, P_OUT, P_DBG, P_WS = range(16, 50, 2)
sNON = 50
R_X, R_WG, R_WU, R_WD, R_WS, R_OUT = 52, 56, 60, 64, 68, 72
sPI = 76
sLB, sFB, sT2, sPAIR, sNL2E, sCH, sSC = 83, 84, 85, 86, 87, 88, 89
sTB = 90
sIT, sRG, sHS, sFS, sHL = 94, 95, 96, 97, 98
LOG2E = 1.4426950408889634
def f32(x): return "0x%08x" % struct.unpack("<I", struct.pack("<f", x))[0]

a = Asm()
VP = 31
def stamp(i):
    if PROF: a(f"s_memtime s[92:93]\ns_waitcnt lgkmcnt(0)\nv_writelane_b32 v{VP}, s92, {i}")
def fstamp(i):
    if FINE: stamp(i)
def dump_stamps():
    if PROF:
        a(f"""s_lshl_b32 s92, s2, 3
s_add_u32 s92, s92, s{sW}
s_lshl_b32 s92, s92, 8
s_add_u32 s92, s92, {WS_STAMP}
v_lshlrev_b32 v1, 2, v0
buffer_store_dword v{VP}, v1, {s(R_WS,4)}, s92 offen""")
def srd(r, p, n):
    a(f"s_mov_b64 {s(r,2)}, {s(p,2)}\ns_mov_b32 s{r+2}, {n}\ns_mov_b32 s{r+3}, 0x20000")
def prio(p, cur=None):
    a(f"s_setprio {p}")
def cmul(d, x, m, t, conj=False):
    i1 = f"v_pk_mul_f32 {v(t,2)}, {v(x,2)}, {v(m,2)} op_sel:[0,0] op_sel_hi:[0,1]" + (" neg_hi:[0,1]" if conj else "")
    i2 = f"v_pk_fma_f32 {v(d,2)}, {v(x,2)}, {v(m,2)}, {v(t,2)} op_sel:[1,1,0] op_sel_hi:[1,0,1]" + ("" if conj else " neg_lo:[1,0,0]")
    return i1, i2
def cmuls(lst, temps):
    pairs = [cmul(d, x, m, temps[i], cj) for i, (d, x, m, cj) in enumerate(lst)]
    for p in pairs: a(p[0])
    for p in pairs: a(p[1])
def spin(body, done_branch, n=SPIN):
    L = a.label("spin"); E = a.label("spinend")
    a(f"s_mov_b32 s{sCNT}, {n}\n{L}:\n{body}\n{done_branch} {E}\ns_sub_u32 s{sCNT}, s{sCNT}, 1\ns_cbranch_scc0 {L}\n{E}:")
def check_or_poll(vdst, voff, off):
    E = a.label("ok")
    a(f"v_cmp_ne_u32 vcc, s{sNON}, v{vdst}\ns_cbranch_vccz {E}")
    spin(f"buffer_load_dword v{vdst}, v{voff}, {s(R_WS,4)}, 0 offen offset:{off} sc1\ns_waitcnt vmcnt(0)\nv_cmp_ne_u32 vcc, s{sNON}, v{vdst}", "s_cbranch_vccz")
    a(f"{E}:")
def nonce_issue(vdst, vzero): a(f"global_load_dword v{vdst}, v{vzero}, {s(P_DBG,2)} sc1")
def nonce_check(vdst, vzero):
    E = a.label("nonok")
    a(f"v_readfirstlane_b32 s{sNON}, v{vdst}\ns_cmp_lg_u32 s{sNON}, 0\ns_cbranch_scc1 {E}")
    spin(f"global_load_dword v{vdst}, v{vzero}, {s(P_DBG,2)} sc1\ns_waitcnt vmcnt(0)\nv_readfirstlane_b32 s{sNON}, v{vdst}\ns_cmp_lg_u32 s{sNON}, 0", "s_cbranch_scc1")
    a(f"{E}:")
def lds_cnt_wait(vtmp, vaddr, off, target):
    spin(f"ds_read_b32 v{vtmp}, v{vaddr} offset:{off}\ns_waitcnt lgkmcnt(0)\nv_readfirstlane_b32 s{sT0}, v{vtmp}\ns_cmp_ge_u32 s{sT0}, {target}", "s_cbranch_scc1", SPIN*8)

HEAVY = opt("heavy", 0)
if HEAVY:
    UNIT_OF = [7, 2, 8, 0, 9, 5, 6, 1]; WUNIT = [7, 8, 9, 7, 8, 9, 7, 8, 9, 7, 8, 0, 9, 1]
    PB_DMA = {8: [("w", 10), ("w", 11)], 9: [("w", 12), ("w", 13)], 10: [("wd", 0), ("wd", 1)], 11: [("wd", 2)], 12: [("wd", 3)]}
else:
    UNIT_OF = [0, 1, 2, 9, 7, 5, 6, 8]; WUNIT = [7, 8, 9, 7, 8, 9, 7, 8, 9, 7, 8, 9, 7, 8]
    PB_DMA = {8: [("w", 10)], 9: [("w", 11)], 10: [("w", 12)], 11: [("w", 13), ("wd", 0), ("wd", 1)], 12: [("wd", 2), ("wd", 3)]}
UNIT_OF = UNIT_OF + UNIT_OF[:6]
sUT = 77
PR_MM = opt("prmm", 2)
PR_EB = opt("preb", 2)
KP = 128
vXA, vWA, vL16, vFLG, vPOL, vWdD, vWB = 1, 5, 6, 7, 8, 9, 10
vWA0, vDSK, vWDm = 12, 13, 30
vKW, vKR, vKR2, vPW, vXD, vTW = 38, 135, 42, 43, 44, 45
F0, F1, ACC = 32, 48, 64
a(f"""{NAME}_kernel:
s_cmp_ge_u32 s2, 256
s_cbranch_scc1 L_exit
s_load_dwordx16 s[16:31], s[0:1], 0
s_load_dwordx16 s[32:47], s[0:1], 64
s_load_dwordx2 s[48:49], s[0:1], 128
""" + ("s_memtime s[100:101]\n" if PROF else "") + f"""
v_lshrrev_b32 v1, 6, v0
v_and_b32 v0, 63, v0
v_readfirstlane_b32 s{sW}, v1
s_and_b32 s{sX}, s2, 7
s_lshr_b32 s{sJ}, s2, 3
s_cmp_ge_u32 s{sJ}, 28
s_cbranch_scc1 L_helper
s_mul_i32 s{sPAIR}, s{sX}, 28
s_add_u32 s{sPAIR}, s{sPAIR}, s{sJ}
s_bfe_u32 s{sCH}, s{sW}, 0x10001
; state = 64*quarter + lane ; quarter = (w&1) + 2*(w>>2)
s_and_b32 s{sT0}, s{sW}, 1
s_lshr_b32 s{sT1}, s{sW}, 2
s_lshl1_add_u32 s{sT0}, s{sT1}, s{sT0}
s_lshl1_add_u32 s{sT1}, s{sPAIR}, s{sCH}
s_lshl2_add_u32 s{sT0}, s{sT1}, s{sT0}
s_lshl_b32 s{sT0}, s{sT0}, 7
s_lshl_b32 s{sT3}, s{sT1}, 1
v_lshl_add_u32 v16, v0, 1, s{sT0}
v_mov_b32 v11, s{sT3}
v_mov_b32 v{vDSK}, 0
v_mov_b64 v[{KP}:{KP+1}], 0
v_mov_b64 v[{KP+2}:{KP+3}], 0
v_mov_b64 v[{KP+4}:{KP+5}], 0
v_mov_b32 v{KP+6}, 0
s_mul_i32 s{sJQ}, s{sJ}, 37
s_lshr_b32 s{sJQ}, s{sJQ}, 8
s_mul_i32 s{sT0}, s{sJQ}, 7
s_sub_u32 s{sJR}, s{sJ}, s{sT0}
s_and_b32 s{sW4}, s{sW}, 3
s_and_b32 s{sLB}, s{sX}, 6
s_lshl1_add_u32 s{sLB}, s{sLB}, s{sJQ}
s_and_b32 s{sFB}, s{sX}, 1
s_mul_i32 s{sFB}, s{sFB}, 7
s_add_u32 s{sFB}, s{sFB}, s{sJR}
; rotation table: nibble i = (2jq + jr + i) mod 7
s_lshl1_add_u32 s{sT0}, s{sJQ}, s{sJR}
s_sub_u32 s{sT1}, s{sT0}, 7
s_cselect_b32 s{sT0}, s{sT0}, s{sT1}
s_lshl_b32 s{sT0}, s{sT0}, 2
s_mov_b32 s{sPI}, 0x06543210
s_mov_b32 s{sPI+1}, 0x00654321
s_lshr_b64 {s(sPI,2)}, {s(sPI,2)}, s{sT0}
s_lshl_b32 s{sWK}, s{sW4}, 10
v_lshrrev_b32 v17, 3, v0
v_and_b32 v18, 7, v0
; X: row l = 256*(lb>>1) + 32*(lb&1) + 2w + (r8>>2) + 64*(r8&3) (+8i); chunk c = c' ^ (4*(w&1) + (r8>>1))
v_and_b32 v20, 3, v17
v_lshrrev_b32 v21, 2, v17
v_lshl_add_u32 v20, v20, 6, v21
s_lshr_b32 s{sT0}, s{sLB}, 1
s_and_b32 s{sT1}, s{sLB}, 1
s_lshl3_add_u32 s{sT0}, s{sT0}, s{sT1}
s_lshl4_add_u32 s{sT0}, s{sT0}, s{sW4}
s_lshl_b32 s{sT0}, s{sT0}, 1
v_add_u32 v20, s{sT0}, v20
v_mul_u32_u24 v20, 896, v20
s_and_b32 s{sT1}, s{sW4}, 1
s_lshl_b32 s{sT1}, s{sT1}, 2
v_lshrrev_b32 v21, 1, v17
v_xor_b32 v21, v21, v18
v_xor_b32 v21, s{sT1}, v21
v_lshl_add_u32 v{vXD}, v21, 4, v20
; W: (8w + r8)*3584 + (c' ^ 4*((r8>>1)&1))*16 + fb*256
v_lshlrev_b32 v19, 1, v17
v_and_b32 v19, 4, v19
v_xor_b32 v19, v19, v18
v_lshlrev_b32 v19, 4, v19
s_lshl_b32 s{sT0}, s{sW4}, 3
v_add_u32 v20, s{sT0}, v17
v_mul_u32_u24 v20, 3584, v20
s_lshl_b32 s{sT2_}, s{sFB}, 8
v_add3_u32 v{vWDm}, v20, v19, s{sT2_}
s_mov_b32 s{R_X+2}, {2048*896}
s_mov_b32 s{R_X+3}, 0x20000
s_mov_b32 s{R_WG+2}, {448*3584}
s_mov_b32 s{R_WG+3}, 0x20000
s_mov_b64 {s(R_WU+2,2)}, {s(R_WG+2,2)}
s_mov_b64 {s(R_WD+2,2)}, {s(R_WG+2,2)}
s_mov_b64 {s(R_OUT+2,2)}, {s(R_X+2,2)}
s_mov_b32 s{R_WS+2}, {WS_USED}
s_mov_b32 s{R_WS+3}, 0x20000
s_waitcnt lgkmcnt(0)
""")
for i, p in enumerate([P_ARE, P_AIM, P_BRE, P_BIM, P_CRE, P_CIM]):
    a(f"global_load_short_d16_hi v{KP+i}, v16, {s(p,2)}")
a(f"global_load_short_d16_hi v{KP+6}, v11, {s(P_LDT,2)}")
a(f"global_load_short_d16_hi v{vDSK}, v11, {s(P_DSK,2)}")
for r, p in [(R_X, P_U), (R_WG, P_WG), (R_WU, P_WU), (R_WD, P_WD), (R_WS, P_WS), (R_OUT, P_OUT)]:
    a(f"s_mov_b64 {s(r,2)}, {s(p,2)}")
if PROF: a(f"v_mov_b32 v{VP}, 0\nv_writelane_b32 v{VP}, s100, 0")
if not FINE: stamp(14)
def pi(dst, i): return f"s_bfe_u32 s{dst}, s{sPI}, {hex(0x40000 + 4*i)}"
def dma_x_list(slot):
    out = []
    for i in range(4):
        g = [f"s_add_u32 m0, s{sWK}, {slot*UNIT + i*4096}"]
        g.append(f"s_add_u32 s78, s78, 7168" if i else pi(78, slot) + f"\ns_lshl_b32 s78, s78, 7")
        g.append(f"buffer_load_dwordx4 v{vXD}, {s(R_X,4)}, s78 offen lds")
        out.append("\n".join(g))
    return out
sD0, sD1 = 78, 79
def dma_w_list(g):
    p, i7 = divmod(g, 7)
    out = []
    for up in range(2):
        for i in range(2):
            x = [f"s_add_u32 m0, s{sWK}, {WUNIT[g]*UNIT + up*8192 + i*4096}"]
            if up == 0 and i == 0:
                x.append(pi(sD0, i7) + f"\ns_mul_i32 s{sD0}, s{sD0}, {64*3584}")
                if p: x.append(f"s_add_u32 s{sD0}, s{sD0}, 128")
            if up == 0 and i == 1: x.append(f"s_add_u32 s{sD1}, s{sD0}, {32*3584}")
            x.append(f"buffer_load_dwordx4 v{vWDm}, {s(R_WU if up else R_WG,4)}, s{sD1 if i else sD0} offen lds")
            out.append("\n".join(x))
    return out
def dma_wd_list(n):
    p, i7 = divmod(n, 7)
    out = []
    for i in range(4):
        g = [f"s_add_u32 m0, s{sWK4}, {UNIT_OF[n]*UNIT + i*1024}"]
        if i == 0:
            g.append(pi(sD0, i7) + f"\ns_mul_i32 s{sD0}, s{sD0}, {128*896}")
            if p: g.append(f"s_add_u32 s{sD0}, s{sD0}, {64*896}")
        else:
            g.append(f"s_add_u32 s{sD0}, s{sD0}, 7168")
        g.append(f"buffer_load_dwordx4 v{vWdD}, {s(R_WD,4)}, s{sD0} offen lds")
        out.append("\n".join(g))
    return out
def emit(lst):
    for x in lst: a(x)
    return len(lst)
sROLE = 80
a(f"s_cmp_lt_u32 s{sW}, 4\ns_cselect_b32 s{sROLE}, 0, 1")
a(f"""
v_lshlrev_b32 v{vL16}, 4, v0
s_lshl_b32 s{sSC}, s{sW}, 13
s_add_u32 s{sSC}, s{sSC}, {SCR}
v_lshl_add_u32 v{vKW}, v0, 6, s{sSC}
v_bfe_u32 v20, v0, 1, 2
v_lshl_add_u32 v{vKW}, v20, 4, v{vKW}
v_xor_b32 v{vKW+1}, 16, v{vKW}
v_xor_b32 v{vKW+2}, 32, v{vKW}
v_xor_b32 v{vKW+3}, 48, v{vKW}
v_bfe_u32 v20, v0, 2, 2
v_lshrrev_b32 v21, 5, v0
v_lshl_add_u32 v20, v21, 3, v20
v_lshl_add_u32 v{vKR}, v20, 6, s{sSC}
v_bfe_u32 v20, v0, 4, 1
v_bfe_u32 v21, v0, 1, 1
v_lshl_add_u32 v20, v20, 1, v21
v_bfe_u32 v21, v0, 3, 1
v_xor_b32 v20, v20, v21
v_lshl_add_u32 v{vKR}, v20, 4, v{vKR}
v_and_b32 v20, 1, v0
v_lshl_add_u32 v{vKR}, v20, 3, v{vKR}
v_xor_b32 v{vKR2}, 32, v{vKR}
v_add_u32 v{vPW}, s{sSC}, v{vL16}
v_mov_b32 v146, 1.0
v_mov_b32 v147, 0
""")
def g1_zero():
    for r in range(F1, F1+16, 2): a(f"v_mov_b64 {v(r,2)}, 0")
    for i in range(4): a(f"v_mfma_f32_32x32x16_bf16 {v(ACC+16*i,16)}, {v(F1,4)}, {v(F1,4)}, 0")
def g1_setup(p):
    tab = sum(WUNIT[7*p + i] << (4*i) for i in range(7))
    a(f"v_and_b32 v22, 31, v0\nv_lshrrev_b32 v20, 5, v0")
    a(f"""s_and_b32 s{sT0}, s{sW4}, 1
s_lshl_b32 s{sT1}, s{sT0}, 13
v_lshl_add_u32 v21, v22, 7, s{sT1}
v_bfe_u32 v22, v0, 1, 3
v_xor_b32 v22, v22, v20
v_lshl_add_u32 v{vXA}, v22, 4, v21
v_xor_b32 v{vXA+1}, 32, v{vXA}
v_xor_b32 v{vXA+2}, 64, v{vXA}
v_xor_b32 v{vXA+3}, 96, v{vXA}
v_bfe_u32 v21, v0, 2, 2
v_and_b32 v22, 3, v0
v_lshlrev_b32 v22, 3, v22
v_bfe_u32 v23, v0, 4, 1
v_lshl_add_u32 v22, v23, 5, v22
v_lshl_add_u32 v22, v21, 7, v22
v_bfe_u32 v23, v0, 3, 1
v_lshl_add_u32 v22, v23, 6, v22
v_lshl_add_u32 v23, v20, 10, v22
s_lshr_b32 s{sT1}, s{sW4}, 1
s_lshl_b32 s{sT3}, s{sT1}, 6
v_xor_b32 v{vWA0}, s{sT3}, v23
v_add_u32 v{vWA}, {WUNIT[7*p]*UNIT}, v{vWA0}
v_lshl_add_u32 v{vWB}, v20, 9, v22
v_lshlrev_b32 v{vFLG}, 2, v0
s_mov_b32 s{sIT}, 7
s_mov_b32 s{sUT}, {hex(tab)}
s_mov_b32 s{sNL2E}, {f32(-LOG2E)}
s_lshl1_add_u32 s{sT0}, s{sLB}, s{sT0}
s_mul_i32 s{sT0}, s{sT0}, 14
s_add_u32 s{sT0}, s{sT0}, s{sFB}
s_lshl2_add_u32 s{sT0}, s{sT0}, s{sT1}
s_lshl_b32 s{sHS}, s{sT0}, 12
s_add_u32 s{sHS}, s{sHS}, {WS_H + 8192*p}
s_lshl_b32 s{sFS}, s{sT0}, 8
s_add_u32 s{sFS}, s{sFS}, {WS_FLAGH + 512*p}
""")
sROLE = 80
g1_zero()
a(f"""s_cmp_eq_u32 s{sROLE}, 0
s_cbranch_scc1 L_kw0
""")
a(f"""; W touch: rows jq*112 + 56*(w>>1) + min(lane,55), matrix w&1
v_min_u32 v{vTW}, 55, v0
s_lshr_b32 s{sT1}, s{sW4}, 1
s_lshl1_add_u32 s{sT0}, s{sJQ}, s{sT1}
s_mul_i32 s{sT0}, s{sT0}, 56
v_add_u32 v{vTW}, s{sT0}, v{vTW}
v_mul_u32_u24 v{vTW}, 3584, v{vTW}
v_add_u32 v{vTW}, s{sT2_}, v{vTW}
s_bitcmp1_b32 s{sW}, 0
s_cselect_b64 {s(sTB,2)}, {s(P_WU,2)}, {s(P_WG,2)}
""")
if opt("b1w", 0): a("s_waitcnt vmcnt(0)")
emit(dma_x_list(0)); emit(dma_w_list(0))
NB1 = 8
if TOUCH_WA:
    a(f"global_load_dword v46, v{vTW}, {s(sTB,2)}"); NB1 = 9
if PR_KS: prio(PR_KS)
a(f"""s_waitcnt vmcnt({NB1})
s_branch L_kgen
L_kw0:
v_mul_u32_u24 v20, 896, v17
s_lshr_b32 s{sT0}, s{sW4}, 1
s_mul_i32 s{sT0}, s{sT0}, 28
s_and_b32 s{sT1}, s{sW4}, 1
s_add_u32 s{sT0}, s{sT0}, s{sT1}
s_mul_i32 s{sT0}, s{sT0}, {32*7}
s_add_u32 s{sT0}, s{sT0}, s{sJR}
s_lshl_b32 s{sT0}, s{sT0}, 7
v_add3_u32 v{vWdD}, v19, v20, s{sT0}
s_lshl_b32 s{sWK4}, s{sW4}, 12
""")
g1_setup(0)
if not FINE: a("s_waitcnt vmcnt(2)"); stamp(15)
a("s_waitcnt vmcnt(0)")
a("L_kgen:")
stamp(1)
ARE, AIM, BRE, CRE = KP, KP+1, KP+2, KP+4
vDT = 134; E1, E2, E4, WC, W2, BE, BO = 136, 138, 140, 142, 144, 146, 148
TT = [150, 152, 154, 156, 158]
PX = {0: 16, 1: 18, 2: 20, 3: 22, 4: 24, 5: 26, 6: 28, 7: 130, 8: 132}
STG = [160, 168]
DACC, BFR, AFR = 176, 192, 224
c1, c2 = cmul(PX[0], CRE, BRE, 158)
a(f"""v_mul_f32 v{vDT}, {f32(LOG2E)}, v{vDT}
v_exp_f32 v{vDT}, v{vDT}
{c1}
v_cvt_pk_bf16_f32 v{vDT}, v{vDT}, v{vDT}
{c2}
v_lshlrev_b32 v{vDT}, 16, v{vDT}
v_mul_f32 v150, {f32(LOG2E)}, v{vDT}
v_mul_f32 v151, {f32(1/(2*math.pi))}, v{vDT}
v_pk_mul_f32 {v(ARE,2)}, {v(ARE,2)}, v[150:151]
v_pk_mul_f32 {v(PX[0],2)}, {v(PX[0],2)}, {v(vDT,2)} op_sel:[0,0] op_sel_hi:[1,0]
v_mul_f32 v153, 0x41000000, v{AIM}
v_mul_f32 v152, 0x41000000, v{ARE}
v_fract_f32 v153, v153
v_exp_f32 v152, v152
v_cos_f32 v{WC}, v153
v_sin_f32 v{WC+1}, -v153
v_fract_f32 v155, v{AIM}
v_pk_mul_f32 {v(BO,2)}, {v(WC,2)}, v[152:153] op_sel:[0,0] op_sel_hi:[1,0]
v_pk_mul_f32 {v(WC,2)}, {v(WC,2)}, v[152:153] op_sel:[0,0] op_sel_hi:[1,0]
v_exp_f32 v154, v{ARE}
v_cos_f32 v{E1}, v155
v_sin_f32 v{E1+1}, v155
""")
c1, c2 = cmul(W2, WC, WC, 156)
a(f"{c1}\nv_pk_mul_f32 {v(E1,2)}, {v(E1,2)}, v[154:155] op_sel:[0,0] op_sel_hi:[1,0]\n{c2}")
fstamp(15)
def kwrite(chunk, stg):
    ad = vKW + chunk
    a(f"ds_write_b128 v{ad}, {v(stg,4)}\nds_write_b128 v{ad}, {v(stg+4,4)} offset:4096")
def kread(dst):
    for k in range(8):
        a(f"ds_read_b64_tr_b16 {v(dst+4*k,2)}, v{vKR} offset:{1024*k}")
        a(f"ds_read_b64_tr_b16 {v(dst+4*k+2,2)}, v{vKR2} offset:{1024*k+256}")
extra = [[(E2, E1, E1, False)], [(E4, E2, E2, False)], [(PX[1], PX[0], E1, False)], [(PX[2], PX[0], E2, False)], [(PX[3], PX[1], E2, False)],
         [(PX[4], PX[0], E4, False)], [(PX[5], PX[1], E4, False)], [(PX[6], PX[2], E4, False)], [(PX[7], PX[3], E4, False)],
         [(PX[8], PX[0], WC, True)]]
for i in range(16):
    st = STG[(i//4) % 2]
    a(f"v_cvt_pk_bf16_f32 v{st+i%4}, v{BE}, v{BO}\nv_cvt_pk_bf16_f32 v{st+4+i%4}, v{BE+1}, v{BO+1}")
    if i == 0:
        a(f"v_mov_b64 {v(BE,2)}, {v(W2,2)}")
        grp = [(BO, BO, W2, False)] + extra[i]
    else:
        grp = [(BE, BE, W2, False)] + ([(BO, BO, W2, False)] if i < 15 else []) + (extra[i] if i < len(extra) else [])
    cmuls(grp, TT)
    if i % 4 == 3: kwrite(i//4, st)
fstamp(13)
kread(BFR)
Q = BE
def apack(st, rows):
    for i in range(4):
        x, y = rows[2*i], rows[2*i+1]
        a(f"v_cvt_pk_bf16_f32 v{st+i}, v{x}, v{y}\nv_cvt_pk_bf16_f32 v{st+4+i}, v{x+1}, v{y+1}")
apack(STG[0], [PX[i] for i in range(8)])
cmuls([(PX[x], PX[x], Q, True) for x in (0, 2, 4, 6, 8)], TT)
kwrite(0, STG[0])
apack(STG[1], [PX[x] for x in (0, 0, 2, 4, 4, 4, 6, 8)])
cmuls([(PX[x], PX[x], Q, True) for x in (0, 4, 8)], TT)
kwrite(1, STG[1])
cmuls([(PX[y], PX[x], Q, True) for x, y in ((0, 1), (4, 5), (8, 7))], TT)
apack(STG[0], [PX[0], PX[4], PX[8], PX[8], PX[1], PX[5], PX[7], PX[7]])
cmuls([(PX[0], PX[1], Q, True), (PX[8], PX[7], Q, True)], TT)
kwrite(2, STG[0])
cmuls([(PX[1], PX[0], Q, True), (PX[7], PX[8], Q, True)], TT)
cmuls([(PX[2], PX[1], Q, True), (PX[3], PX[7], Q, True)], TT)
cmuls([(PX[4], PX[2], Q, True), (PX[5], PX[3], Q, True)], TT)
apack(STG[1], [PX[0], PX[8], PX[1], PX[7], PX[2], PX[3], PX[4], PX[5]])
kwrite(3, STG[1])
fstamp(14)
kread(AFR)
for k in range(8):
    a(f"s_waitcnt lgkmcnt({min(15, 14-2*k)})")
    a(f"v_mfma_f32_32x32x16_bf16 {v(DACC,16)}, {v(AFR+4*k,4)}, {v(BFR+4*k,4)}, {v(DACC,16) if k else 0}")
for q in range(4):
    a(f"ds_write_b128 v{vPW}, {v(DACC+4*q,4)} offset:{1024*q}")
stamp(2)
a(f"s_cmp_eq_u32 s{sROLE}, 0\ns_cbranch_scc0 L_S1")
PD = 128
if PR_MM: prio(PR_MM)
a("s_waitcnt lgkmcnt(0)")

def g1_reads(st, kap):
    return [f"ds_read_b64_tr_b16 {v(st+8,2)}, v{vWA} offset:{kap*2048}",
            f"ds_read_b64_tr_b16 {v(st+10,2)}, v{vWA} offset:{kap*2048 + 512}",
            f"ds_read_b128 {v(st,4)}, v{vXA+kap}",
            f"ds_read_b128 {v(st+4,4)}, v{vXA+kap} offset:4096",
            f"ds_read_b64_tr_b16 {v(st+12,2)}, v{vWA} offset:{kap*2048 + 8192}",
            f"ds_read_b64_tr_b16 {v(st+14,2)}, v{vWA} offset:{kap*2048 + 8192 + 512}"]
def g1_mfma(st):
    return [f"v_mfma_f32_32x32x16_bf16 {v(ACC+ao,16)}, {v(st+wo,4)}, {v(st+xo,4)}, {v(ACC+ao,16)}"
            for (wo, xo, ao) in ((8, 0, 0), (8, 4, 16), (12, 0, 32), (12, 4, 48))]
ONEW = opt("onew", 0)
p0 = a.pos()
a("L_g1:")
if PROF and FINE: a(f"s_memtime s[92:93]\ns_sub_u32 m0, 39, s{sIT}\ns_waitcnt lgkmcnt(0)\nv_writelane_b32 v{VP}, s92, m0")
a("s_barrier")
if PROF and FINE: a(f"s_memtime s[92:93]\ns_sub_u32 m0, 23, s{sIT}\ns_waitcnt lgkmcnt(0)\nv_writelane_b32 v{VP}, s92, m0")
a("L_g1_body:")
for kap in range(4):
    st_r = F0 if kap % 2 == 0 else F1
    st_m = F1 if kap % 2 == 0 else F0
    rd = g1_reads(st_r, kap); mf = g1_mfma(st_m)
    cw = kap > 0 and not ONEW
    if kap > 0: a(f"s_waitcnt lgkmcnt({0 if ONEW else 3})")
    a(mf[0]); a(rd[0]); a(rd[1]); a(rd[2])
    if cw: a("s_waitcnt lgkmcnt(5)")
    a(mf[1]); a(rd[3]); a(rd[4]); a(rd[5])
    if cw: a("s_waitcnt lgkmcnt(6)")
    a(mf[2])
    a(f"v_add_u32 v{vXA+kap}, {UNIT}, v{vXA+kap}")
    if kap == 0: a(f"s_lshr_b32 s{sUT}, s{sUT}, 4\ns_and_b32 s{sT0}, s{sUT}, 15\ns_lshl_b32 s{sT0}, s{sT0}, 14")
    if kap == 3: a(f"v_add_u32 v{vWA}, s{sT0}, v{vWA0}\ns_sub_u32 s{sIT}, s{sIT}, 1\ns_cmp_lg_u32 s{sIT}, 0")
    a(mf[3])
a(f"s_waitcnt vmcnt(0) lgkmcnt(0)\ns_cbranch_scc1 L_g1")
a.check_backedge(p0, a.pos())
a(f"s_cmp_eq_u32 s{sROLE}, 0\ns_cbranch_scc0 L_S2")

ET = 192
def epilogue():
    out = []
    gi = 0
    for nb in range(2):
        for jf in range(2):
            G = ACC + 16*nb + 8*jf; U = G + 32
            pk = ET + 4*gi
            for half in range(2):
                e = [4*half + i for i in range(4)]
                t = [18 + 4*half + i for i in range(4)]
                out += [f"v_mul_f32 v{t[i]}, s{sNL2E}, v{G+e[i]}" for i in range(4)]
                out += [f"v_exp_f32 v{t[i]}, v{t[i]}" for i in range(4)]
                out += [f"v_add_f32 v{t[i]}, 1.0, v{t[i]}" for i in range(4)]
                out += [f"v_rcp_f32 v{t[i]}, v{t[i]}" for i in range(4)]
                out += [f"v_mul_f32 v{t[i]}, v{t[i]}, v{U+e[i]}" for i in range(4)]
                out += [f"v_cvt_pk_bf16_f32 v{pk+2*half+i}, v{t[2*i]}, v{t[2*i+1]}" for i in range(2)]
            out.append(f"buffer_store_dwordx4 {v(pk,4)}, v{vL16}, {s(R_WS,4)}, s{sHS} offen offset:{jf*2048 + nb*1024} sc1")
            gi += 1
    return out
def drain_mfma():
    mf = g1_mfma(F1)
    return [mf[0], mf[2], mf[1], mf[3]]

vZ, vNV, vONE, vCN, vPR, vTMP = 16, 17, 26, 27, 28, 29
PKD, UDAT = 160, 172
vZ4, vPADA, vXCA, vUWA, vKWA, vKWB, vUP, vUO, vUF = 180, 184, 185, 186, 187, 188, 189, 190, 191
a("s_barrier")
stamp(3)
queue = []
def issue(txt, tag):
    a(txt); queue.append(tag)
def wait_tags(pred, extra=""):
    idx = max([i for i, t in enumerate(queue) if pred(t)], default=-1)
    del queue[:idx+1]
    if idx >= 0 or extra: a(f"s_waitcnt vmcnt({min(63, len(queue))}){extra}")
def wait_for(tag): wait_tags(lambda t: t == tag)
def mix(valu, dmas):
    n = len(dmas); per = len(valu) / (n + 0.5) if n else 0
    k = 0
    for i, x in enumerate(valu):
        while k < n and i >= k*per: issue(*dmas[k]); k += 1
        if x.startswith("buffer_store"): issue(x, "S")
        else: a(x)
    while k < n: issue(*dmas[k]); k += 1
def tagged(lst, tag): return [(x, tag) for x in lst]
def p_bar(g):
    fstamp(48 + g)
    wait_tags(lambda t: t == ("w", g), " lgkmcnt(0)")
    fstamp(32 + g)
    a("s_barrier")
    fstamp(16 + g)
reduce_k = []
for e in range(8): reduce_k += [f"v_add_f32 v{PD+e}, v{PD+e}, v{PD+8+e}", f"v_add_f32 v{PD+16+e}, v{PD+16+e}, v{PD+24+e}"]
for e in range(8): reduce_k.append(f"v_add_f32 v{PD+e}, v{PD+e}, v{PD+16+e}")
c = lambda d, x, y: f"v_cvt_pk_bf16_f32 v{PKD+d}, v{PD+x}, v{PD+y}"
pack_k = f"""s_bitcmp1_b32 s{sW}, 0
s_cbranch_scc1 L_pack_hi
s_mov_b64 exec, 1
v_add_f32 v{PD}, v{vDSK}, v{PD}
s_mov_b64 exec, -1
{c(0,0,1)}
{c(1,2,3)}
{c(2,4,5)}
{c(3,6,7)}
s_branch L_pack_done
L_pack_hi:
""" + "\n".join(c(d, x, y) for d, (x, y) in enumerate([(0,0),(0,1),(1,1),(2,2),(4,4),(4,4),(4,5),(5,5),(6,6),(6,6),(6,7),(7,7)])) + f"""
s_mov_b32 exec_lo, 0xaaaaaaaa
s_mov_b32 exec_hi, 0xaaaaaaaa
v_mov_b32 v{PKD+6}, v{PKD+7}
v_mov_b32 v{PKD+10}, v{PKD+11}
s_mov_b64 exec, -1
L_pack_done:"""
addr1 = f"""v_mov_b64 {v(vZ4,2)}, 0
v_mov_b64 {v(vZ4+2,2)}, 0
v_lshrrev_b32 v32, 3, v0
v_and_b32 v33, 7, v0
v_mul_u32_u24 v{vPADA}, {RS}, v32
v_lshl_add_u32 v{vPADA}, v33, 4, v{vPADA}
v_add_u32 v{vPADA}, {UB}, v{vPADA}
v_lshrrev_b32 v34, 5, v0
v_mul_u32_u24 v35, {KS}, v34
v_and_b32 v32, 3, v32
v_lshl_add_u32 v35, v32, 4, v35
s_mov_b32 exec_lo, 0x80808080|s_mov_b32 exec_hi, 0x80808080|v_add_u32 v{vPADA}, {KB}, v35|s_mov_b64 exec, -1
s_lshl_b32 s{sT0}, s{sW4}, 9|s_add_u32 s{sT0}, s{sT0}, {XCH}|v_lshl_add_u32 v{vXCA}, v0, 3, s{sT0}
v_mov_b32 v{vCN}, {CNT}
v_mov_b32 v{vONE}, 1
v_and_b32 v32, 31, v0
s_mul_i32 s{sT0}, s{sCH}, {KS}|s_add_u32 s{sT0}, s{sT0}, {KB + 64}|v_lshl_add_u32 v32, v32, 4, s{sT0}
s_bitcmp1_b32 s{sW}, 0|s_cselect_b32 s{sT1}, 9, 3|v_lshl_add_u32 v{vKWA}, v34, s{sT1}, v32
v_lshl_add_u32 v{vKWB}, v34, 10, v32""".replace("|", "\\n").split("\n")
addr2 = f"""v_and_b32 v{vUP}, 31, v0
v_lshlrev_b32 v{vUP}, 8, v{vUP}
v_add_u32 v{vUP}, {WS_FLAGU}, v{vUP}
v_bfe_u32 v32, v0, 3, 1
s_lshl_b32 s{sT0}, s{sPAIR}, 1|v_add_u32 v33, s{sT0}, v32
v_xor_b32 v33, v33, v0
v_bfe_u32 v34, v33, 1, 2
v_lshl_add_u32 v32, v32, 2, v34
v_mul_u32_u24 v32, {RS}, v32
v_and_b32 v33, 1, v33
v_lshl_add_u32 v32, v33, 4, v32
v_lshrrev_b32 v33, 4, v0
v_lshl_add_u32 v32, v33, 5, v32
s_lshl_b32 s{sT0}, s{sW4}, 8|s_add_u32 s{sT0}, s{sT0}, {UB + 112}|v_add_u32 v{vUWA}, s{sT0}, v32
v_mul_u32_u24 v{vUO}, 57344, v33
v_and_b32 v32, 15, v0
v_lshl_add_u32 v{vUO}, v32, 4, v{vUO}""".replace("|", "\\n").split("\n")
addr3 = f"""v_add_u32 v{vWB}, s{sWK4}, v{vWB}
v_xor_b32 v{vWB+1}, 64, v{vWB}
v_add_u32 v{vWB+2}, 0x10000, v{vWB}
v_add_u32 v{vWB+3}, 0x10000, v{vWB+1}
v_add_u32 v{vWB+4}, 0x20000, v{vWB}
v_add_u32 v{vWB+5}, 0x20000, v{vWB+1}
s_lshl2_add_u32 s{sHL}, s{sX}, s{sJQ}|s_mul_i32 s{sHL}, s{sHL}, 14|s_lshr_b32 s{sT0}, s{sW4}, 1|s_mul_i32 s{sT0}, s{sT0}, 7|s_add_u32 s{sHL}, s{sHL}, s{sT0}
s_and_b32 s{sT0}, s{sW4}, 1|s_lshl2_add_u32 s{sHL}, s{sHL}, s{sT0}
v_min_u32 v{vPOL}, 6, v0
s_lshl_b32 s{sT0}, s{sHL}, 8|s_add_u32 s{sT0}, s{sT0}, {WS_FLAGH}|v_lshl_add_u32 v{vPOL}, v{vPOL}, 10, s{sT0}
s_lshl_b32 s{sHL}, s{sHL}, 12|s_add_u32 s{sHL}, s{sHL}, {WS_H}""".replace("|", "\\n").split("\n")
fix = lambda L: [x.replace("\\n", "\n") for x in L]
addr1, addr2, addr3 = fix(addr1), fix(addr2), fix(addr3)
epi = epilogue()
EB = [0, opt("e7", 45), opt("e8", 90), opt("e9", 135), 180]
def pb(g): return [x for kind, n in PB_DMA[g] for x in tagged(dma_w_list(n) if kind == "w" else dma_wd_list(n), (kind, n))]
dm = drain_mfma(); w9 = tagged(dma_w_list(9), ("w", 9))
a(f"v_mov_b32 v{vZ}, 0")
for i in range(4): a(dm[i])
if PR_MM != PR_LD: prio(PR_LD)
for i in range(4): issue(*w9[i])
issue(f"global_load_dword v{vNV}, v{vZ}, {s(P_DBG,2)} sc1", "non")
mix(epi[:EB[1]], [])
for g in (8, 9, 10):
    p_bar(g)
    mix(epi[EB[g-7]:EB[g-6]], pb(g))
def flagA():
    wait_for("S")
    nonce_check(vNV, vZ)
    issue(f"buffer_store_dword v{vNV}, v{vFLG}, {s(R_WS,4)}, s{sFS} offen sc1", "flag")
p_bar(11)
FA = opt("fa", 2)
emit(addr2[:3])
issue(f"buffer_load_dword v{vUF}, v{vUP}, {s(R_WS,4)}, 0 offen sc1", "upoll")
if FA == 0: flagA()
mix(addr3 + [f"v_mov_b64 {v(vZ4,2)}, 0", f"v_mov_b64 {v(vZ4+2,2)}, 0", f"v_mov_b32 v{vCN}, {CNT}", f"v_mov_b32 v{vONE}, 1",
     f"s_lshl_b32 s{sT0}, s{sW4}, 9\ns_add_u32 s{sT0}, s{sT0}, {XCH}\nv_lshl_add_u32 v{vXCA}, v0, 3, s{sT0}"], pb(11))
if FA == 1: flagA()
p_bar(12)
if FA == 2: flagA()
a(f"ds_write_b64 v{vXCA}, {v(vZ4,2)}\ns_mov_b64 exec, 1\nds_write_b128 v{vCN}, {v(vZ4,4)}\ns_mov_b64 exec, -1")
mix([], pb(12))
p_bar(13)
stamp(4)
if PR_G2 != PR_LD: prio(PR_G2)
wait_for("upoll")
check_or_poll(vUF, vUP, 0)
a(f"s_mov_b64 exec, 1\nds_add_u32 v{vCN}, v{vONE} offset:4\ns_mov_b64 exec, -1")
PA = opt("pa", 1)
pollA = (f"buffer_load_dword v{vPR}, v{vPOL}, {s(R_WS,4)}, 0 offen sc1", "pollA")
for n in (4, 5, 6, 7):
    if n - 4 == PA: issue(*pollA)
    if n == 6: lds_cnt_wait(vTMP, vCN, 0, 4)
    for x in dma_wd_list(n): issue(x, ("wd", n))
stamp(5)
wait_for("pollA")
check_or_poll(vPR, vPOL, 0)
stamp(6)
HSC = " sc1"
HF = [64 + 16*i for i in range(4)] + [208 + 16*i for i in range(3)]
def h_list(n):
    p, i7 = divmod(n, 7)
    out = []
    for i in range(4):
        pre = pi(sT1, i7) + f"\ns_lshl_b32 s{sT1}, s{sT1}, 14\ns_add_u32 s{sT1}, s{sT1}, s{sHL}\n" if i == 0 else ""
        out.append((pre + f"buffer_load_dwordx4 {v(HF[i7]+4*i,4)}, v{vL16}, {s(R_WS,4)}, s{sT1} offen offset:{1024*i}{HSC}", ("h", n, i//2)))
    return out
AC2 = 128
def g2_reads(st, n, ks):
    u = UNIT_OF[n]; hi = u // 4; off = (u % 4)*UNIT + ks*2048
    return [f"ds_read_b64_tr_b16 {v(st+4*mb+2*sec,2)}, v{vWB+2*hi+mb} offset:{off + sec*1024}" for mb in range(2) for sec in range(2)]
for i in range(3):
    for x in h_list(i): issue(*x)
def checkB():
    stamp(7)
    wait_for("pollB")
    check_or_poll(vPR, vPOL, 512)
    a(f"s_add_u32 s{sHL}, s{sHL}, 8192")
    stamp(8)
pollB = (f"buffer_load_dword v{vPR}, v{vPOL}, {s(R_WS,4)}, 0 offen offset:512 sc1", "pollB")
plan = [("h", 3), ("h", 4), ("h", 5), ("h", 6), ("w", 8), ("w", 9), ("w", 10), ("w", 11), None, ("w", 12), ("h", 7), ("h", 8), ("h", 9), ("w", 13),
        ("h", 10), None, ("h", 11), None, ("h", 12), None, ("h", 13)]
if opt("plan", 0) == 1:
    plan = [("h", 3), ("h", 4), ("h", 5), ("h", 6), ("w", 8), ("w", 9), ("w", 10), ("w", 11), ("h", 7), ("h", 8), ("w", 12), ("h", 9), ("w", 13), None,
            ("h", 10), None, ("h", 11), None, ("h", 12), None, ("h", 13)]
sched = {i: (h_list(x[1]) if x[0] == "h" else tagged(dma_wd_list(x[1]), ("wd", x[1]))) for i, x in enumerate(plan) if x}
sched[plan.index(("h", 7)) - opt("pollb", 4)].insert(0, pollB)
steps = [(n, ks) for n in range(14) for ks in range(2)]
wait_for(("wd", 0))
for x in g2_reads(F0, *steps[0]): a(x)
for si, (n, ks) in enumerate(steps):
    st = F0 + 8*(si % 2); st2 = F0 + 8*((si+1) % 2)
    nxt = []
    if si < len(plan) and plan[si] == ("h", 7): checkB()
    if si + 1 < len(steps):
        wait_for(("wd", steps[si+1][0]))
        nxt = g2_reads(st2, *steps[si+1])
    if G2S and si < 24: stamp(40 + si)
    wait_for(("h", n, ks))
    a("s_waitcnt lgkmcnt(0)")
    if G2S and si < 24: stamp(16 + si)
    items = list(sched.get(si, []))
    if si < len(plan) and plan[si]:
        kind, m = plan[si]
        if kind == "w" and m >= 8: assert si >= 2*(m-8) + 1
        if kind == "h" and m >= 7: assert si >= 2*(m-7) + 2
    k = 0
    for mb in range(2):
        for nb in range(2):
            acc = AC2 + 32*mb + 16*nb
            a(f"v_mfma_f32_32x32x16_bf16 {v(acc,16)}, {v(st+4*mb,4)}, {v(HF[n%7]+8*ks+4*nb,4)}, {0 if si == 0 else v(acc,16)}")
            if k < 2 and nxt: a(nxt[2*k]); a(nxt[2*k+1])
            for _ in range((len(items) + 3 - k) // (4 - k)): issue(*items.pop(0))
            if si == len(plan) - 1 - opt("asig", 0) and k == 3: a(f"s_mov_b64 exec, 1\nds_add_u32 v{vCN}, v{vONE} offset:8\ns_mov_b64 exec, -1")
            if si == 26 and k == 2:
                a(f"""v_and_b32 v18, 15, v0
v_lshlrev_b32 v18, 8, v18
v_bfe_u32 v19, v0, 4, 1
v_lshl_add_u32 v18, v19, 14, v18
s_add_u32 s{sT0}, s{sWK4}, {5*UNIT}
v_add_u32 v18, s{sT0}, v18""")
            if si == 26 and k == 3:
                a(f"""v_lshrrev_b32 v19, 5, v0
v_and_b32 v20, 7, v0
v_xor_b32 v19, v19, v20
v_lshl_add_u32 v18, v19, 4, v18""")
            if si == 27 and k == 0:
                a("v_xor_b32 v19, 32, v18\nv_xor_b32 v20, 64, v18\nv_xor_b32 v21, 96, v18")
            k += 1
stamp(9)
for mb in range(2):
    for nb in range(2):
        for vq in range(4):
            a(f"ds_write_b128 v{18+vq}, {v(AC2+32*mb+16*nb+4*vq,4)} offset:{mb*128 + nb*32768}")
a("s_branch L_final")

a("L_S1:")
if PR_KS != PR_LD: prio(PR_LD)
queue[:] = [("w", 0)]*8 + ["t"]*(NB1-8)
for g in (1, 2):
    for x in dma_x_list(g) + dma_w_list(g): issue(x, ("w", g))
if TOUCH_WB: issue(f"global_load_dword v46, v{vTW}, {s(sTB,2)} offset:128", "t")
vUA, vKA, vXCA, vCNA = 14, 15, 9, 27
def s_addr():
    a(f"""v_and_b32 v20, 3, v0
v_mul_u32_u24 v21, {RS}, v20
v_bfe_u32 v22, v0, 2, 3
v_lshrrev_b32 v23, 5, v0
v_add_u32 v22, v22, v23
v_lshl_add_u32 v21, v22, 4, v21
s_mul_i32 s{sT0}, s{sCH}, {4*RS}
s_add_u32 s{sT0}, s{sT0}, {UB}
v_add_u32 v{vUA}, s{sT0}, v21
v_bfe_u32 v21, v0, 4, 1
v_lshl_add_u32 v21, v21, 2, v20
v_bfe_u32 v22, v0, 2, 2
v_lshl_add_u32 v22, v23, 3, v22
v_sub_u32 v21, v21, v22
s_mul_i32 s{sT0}, s{sCH}, {KS}
s_add_u32 s{sT0}, s{sT0}, {KB + 96}
v_lshl_add_u32 v{vKA}, v21, 3, s{sT0}
s_lshl_b32 s{sT0}, s{sW4}, 9
s_add_u32 s{sT0}, s{sT0}, {XCH}
v_lshl_add_u32 v{vXCA}, v0, 3, s{sT0}
v_mov_b32 v{vCNA}, {CNT}
v_mov_b32 v{vONE}, 1
v_lshlrev_b32 v20, 6, v20
v_lshrrev_b32 v21, 2, v0
v_add_lshl_u32 v8, v20, v21, 2
""")
a(f"""s_lshl_b32 s{sT0}, s{sCH}, 14
s_and_b32 s{sT1}, s{sW}, 1
s_lshl_b32 s{sT1}, s{sT1}, 11
s_add_u32 s{sT0}, s{sT0}, s{sT1}
s_add_u32 s{sT0}, s{sT0}, {SCR}
v_add_u32 v14, s{sT0}, v{vL16}
""")
addr1 = [x for x in addr1 if f"v{vCN}," not in x and f"v{vONE}," not in x and "v185" not in x]
for g in range(0, 7):
    fstamp(48 + 7 + g)
    wait_tags(lambda t: t == ("w", g), " lgkmcnt(0)")
    fstamp(32 + 7 + g)
    a("s_barrier")
    fstamp(16 + 7 + g)
    if g == 0:
        for i, wo in enumerate([0, 8192, 32768, 40960]):
            for q in range(2):
                a(f"ds_read_b128 {v(PD+8*i+4*q,4)}, v14 offset:{wo + 1024*q}")
        g1_setup(1); a(f"v_mov_b32 v{vZ}, 0")
    else:
        work = {1: [], 2: addr2[3:], 3: addr1, 4: [], 5: reduce_k + [pack_k], 6: []}[g]
        mix(work, tagged((dma_x_list(g + 2) if g + 2 <= 6 else []) + dma_w_list(g + 2), ("w", g + 2)))
    if g == 6:
        issue(f"global_load_dword v{vNV}, v{vZ}, {s(P_DBG,2)} sc1", "non"); s_addr()
wait_for(("w", 7))
stamp(3)
if PR_MM != PR_LD: prio(PR_MM)
S_PENDING = len(queue)
a("s_branch L_g1")
a("L_S2:")
dm = drain_mfma()
a(dm[0]); a(f"s_mov_b64 exec, 1\nds_add_u32 v{vCNA}, v{vONE}\ns_mov_b64 exec, -1"); a(dm[1]); a(dm[2]); a(dm[3])
if PR_EB != PR_MM: prio(PR_EB)
a(f"""s_mul_i32 s{sT3}, s{sW4}, {8*57344}
s_lshl_b32 s{sT1}, s{sPAIR}, 8
s_add_u32 s{sT3}, s{sT3}, s{sT1}
s_add_u32 s{sT3}, s{sT3}, {WS_UT}
s_add_u32 s{sT1}, s{sT3}, {4*57344}
s_lshl4_add_u32 s{sT2_}, s{sX}, s{sJQ}
s_lshl_b32 s{sT2_}, s{sT2_}, 6
s_add_u32 s{sT2_}, s{sT2_}, {WS_G}
""")
nonce_check(vNV, vZ)
stamp(9)
epi = epilogue()
UL = opt("ul", 0)
for x in epi[:UL]: a(x)
lds_cnt_wait(vTMP, vCNA, 4, 1)
a(f"""buffer_load_dwordx4 {v(UDAT,4)}, v{vUO}, {s(R_WS,4)}, s{sT3} offen sc1
buffer_load_dwordx4 {v(UDAT+4,4)}, v{vUO}, {s(R_WS,4)}, s{sT1} offen sc1
buffer_load_dword v54, v8, {s(R_WS,4)}, s{sT2_} offen sc1
""")
for x in epi[UL:]: a(x)
nst = sum(x.startswith("buffer_store") for x in epi[UL:])
stamp(13 if not FINE else 63)
a(f"""ds_write_b128 v{vPADA}, {v(vZ4,4)}
s_bitcmp1_b32 s{sW}, 0
s_cbranch_scc1 L_kw_hi
ds_write_b64 v{vKWA}, {v(PKD,2)}
ds_write_b64 v{vKWA}, {v(PKD+2,2)} offset:512
s_branch L_kw_done
L_kw_hi:
ds_write_b128 v{vKWA}, {v(PKD,4)} offset:1024
ds_write_b128 v{vKWB}, {v(PKD+4,4)} offset:2048
ds_write_b128 v{vKWB}, {v(PKD+8,4)} offset:2560
L_kw_done:
v_add_u32 v55, {GL}, v{vFLG}
v_mov_b64 v[40:41], 0
s_waitcnt vmcnt({nst})
ds_write_b128 v{vUWA}, {v(UDAT,4)}
ds_write_b128 v{vUWA}, {v(UDAT+4,4)} offset:128
ds_write_b32 v55, v54
s_mov_b64 exec, 1\nds_add_u32 v{vCNA}, v{vONE} offset:12\ns_mov_b64 exec, -1
""")
lds_cnt_wait(vTMP, vCNA, 12, 4)
if DUMPK:
    a(f"""s_mul_i32 s{sT0}, s{sCH}, {KS}
s_and_b32 s{sT1}, s{sW}, 1
s_lshl_b32 s{sT1}, s{sT1}, 11
s_add_u32 s{sT0}, s{sT0}, s{sT1}
s_add_u32 s{sT0}, s{sT0}, {KB + 64}
v_lshl_add_u32 v60, v0, 4, s{sT0}
ds_read_b128 v[56:59], v60
ds_read_b128 v[48:51], v60 offset:1024
s_lshl_b32 s{sT0}, s{sPAIR}, 1
s_add_u32 s{sT0}, s{sT0}, s{sCH}
s_lshl_b32 s{sT0}, s{sT0}, 12
s_add_u32 s{sT0}, s{sT0}, s{sT1}
s_add_u32 s{sT0}, s{sT0}, {WS_DBG}
s_waitcnt lgkmcnt(0)
buffer_store_dwordx4 v[56:59], v{vL16}, {s(R_WS,4)}, s{sT0} offen
buffer_store_dwordx4 v[48:51], v{vL16}, {s(R_WS,4)}, s{sT0} offen offset:1024
s_waitcnt vmcnt(0)
""")
if PR_CV != PR_EB: prio(PR_CV)
stamp(7)
a(f"s_bitcmp1_b32 s{sW}, 0\ns_cbranch_scc1 L_conv1")
CA = 64; US = [128, 160]; KSr = [192, 224]
def conv(blocks):
    bmax = max(blocks)
    pairs = sorted([(b - t, t, bi) for bi, b in enumerate(blocks) for t in range(b + 1)], key=lambda x: (max(x[0], x[1]), x[2]))
    def reads(rp):
        out = []
        for i in range(bmax + 1):
            out.append(f"ds_read_b128 {v(US[rp%2]+4*i,4)}, v{vUA} offset:{128*i - 32*rp + 96}")
            t = rp + 4*i
            out.append(f"ds_read_b64_tr_b16 {v(KSr[rp%2]+4*i,2)}, v{vKA} offset:{32 + 128*t}")
            out.append(f"ds_read_b64_tr_b16 {v(KSr[rp%2]+4*i+2,2)}, v{vKA} offset:{128*t}")
        return out
    for x in reads(0): a(x)
    seen = set()
    for rp in range(4):
        nxt = reads(rp + 1) if rp < 3 else []
        a("s_waitcnt lgkmcnt(0)")
        fb = f"s_setprio 3\ns_waitcnt vmcnt(0)\nbuffer_store_dword v{vNV}, v{vFLG}, {s(R_WS,4)}, s{sFS} offen sc1\ns_setprio {PR_CV}"
        pl = pairs if rp < 3 else sorted(pairs, key=lambda x: x[2])
        for mi, (sg, t, bi) in enumerate(pl):
            if 18*rp + mi == opt("fbm", 9): a(fb)
            acc = CA + 16*bi
            a(f"v_mfma_f32_32x32x16_bf16 {v(acc,16)}, {v(US[rp%2]+4*sg,4)}, {v(KSr[rp%2]+4*t,4)}, {v(acc,16) if bi in seen else 0}")
            seen.add(bi)
            for _ in range(2):
                if nxt: a(nxt.pop(0))
        assert not nxt
    stamp(4)
    prio(opt("prrd", 2))
    runs = []
    for bi, b in enumerate(blocks):
        if runs and blocks[runs[-1][-1]] == b - 1: runs[-1].append(bi)
        else: runs.append([bi])
    OV = [40, 41]
    outr = [r for r in runs if blocks[r[-1]] < 7]
    inr = [r for r in runs if blocks[r[0]] > 0]
    for r in (3, 2, 1):
        a("s_mov_b32 exec_lo, 0\ns_mov_b32 exec_hi, 0x80000000")
        for run in runs:
            regs = [CA + 16*bi + 4*q + r for bi in run for q in range(4)]
            if run in outr: a(f"v_mov_b32 v{OV[outr.index(run)]}, v{regs[-1]}")
            for i in range(len(regs) - 1, 0, -1): a(f"v_mov_b32 v{regs[i]}, v{regs[i-1]}")
            a(f"v_mov_b32 v{regs[0]}, 0")
        a("s_mov_b64 exec, -1")
        for o in OV: a(f"v_mov_b32_dpp v{o}, v{o} wave_ror:1 row_mask:0xf bank_mask:0xf")
        if r == 1:
            a(f"""s_mov_b32 exec_lo, 0
s_mov_b32 exec_hi, 0x80000000
v_mov_b32 v40, 1.0
v_mov_b32 v41, 1.0
s_mov_b64 exec, -1
ds_write_b64 v{vXCA}, v[40:41]
v_xor_b32 v42, 512, v{vXCA}
""")
        for bi in range(4):
            for q in range(4):
                x = CA + 16*bi + 4*q + r
                a(f"v_add_f32_dpp v{x-1}, v{x}, v{x-1} wave_ror:1 row_mask:0xf bank_mask:0xf")
    a(f"""s_lshl1_add_u32 s{sT1}, s{sPAIR}, s{sCH}
s_lshl_b32 s{sT1}, s{sT1}, 10
""")
    def pub(bi):
        x = CA + 16*bi; b = blocks[bi]
        a(f"""v_cvt_pk_bf16_f32 v{x}, v{x}, v{x+4}
v_mov_b32 v{x+1}, v{vNV}
v_cvt_pk_bf16_f32 v{x+2}, v{x+8}, v{x+12}
v_mov_b32 v{x+3}, v{vNV}
s_add_u32 s{sT3}, s{sT1}, {WS_AT + b*448*1024}
buffer_store_dwordx4 {v(x,4)}, v{vL16}, {s(R_WS,4)}, s{sT3} offen sc1""")
    need = [inr[0][0], inr[1][0]]
    for bi in range(4):
        if bi not in need: pub(bi)
    spin(f"ds_read_b64 v[40:41], v42\ns_waitcnt lgkmcnt(0)\nv_readlane_b32 s{sT0}, v40, 63\ns_cmp_lg_u32 s{sT0}, 0", "s_cbranch_scc1", SPIN*8)
    a(f"""s_mov_b64 exec, 7
v_add_f32 v{CA+16*need[0]}, v40, v{CA+16*need[0]}
v_add_f32 v{CA+16*need[1]}, v41, v{CA+16*need[1]}
s_mov_b64 exec, -1
""")
    for bi in need: pub(bi)
conv([0, 3, 4, 7])
a("s_branch L_convdone\nL_conv1:")
conv([1, 2, 5, 6])
a("L_convdone:")
stamp(5)
a(f"""; a tile: d = 64db + 16w + 4i + (lane>>4); 16 B granule (lane&15) of quarter jq
v_lshrrev_b32 v47, 4, v0
v_and_b32 v48, 15, v0
v_lshlrev_b32 v49, 10, v47
v_lshl_add_u32 v49, v48, 4, v49
s_mul_i32 s{sT0}, s{sX}, 28
s_lshl2_add_u32 s{sT0}, s{sJR}, s{sT0}
s_add_u32 s{sT0}, s{sT0}, s{sW4}
s_lshl_b32 s{sT0}, s{sT0}, 6
s_add_u32 s{sT0}, s{sT0}, s{sJQ}
s_lshl_b32 s{sT0}, s{sT0}, 8
s_add_u32 s{sT0}, s{sT0}, {WS_AT}
s_add_u32 s{sT1}, s{sT0}, 4096
s_add_u32 s{sT2_}, s{sT0}, 8192
s_add_u32 s{sT3}, s{sT0}, 12288
v_lshrrev_b32 v50, 1, v48
s_lshl_b32 s{sIT}, s{sW4}, 1
v_xor_b32 v50, s{sIT}, v50
v_lshlrev_b32 v50, 4, v50
v_lshl_add_u32 v50, v48, 9, v50
v_lshl_add_u32 v50, v47, 1, v50
v_add_u32 v50, {ATL}, v50
v_xor_b32 v51, 16, v50
s_mov_b32 s{sRG}, s{sT0}
""")
prio(0)
lds_cnt_wait(56, vCNA, 8, opt("asign", 4))
prio(2)
stamp(6)
body = ""
for i, so in enumerate([sRG, sT1, sT2_, sT3]):
    body += f"buffer_load_dwordx4 {v(128+4*i,4)}, v49, {s(R_WS,4)}, s{so} offen sc1\n"
body += "s_waitcnt vmcnt(0)\n"
for i in range(8): body += f"v_xor_b32 v{144+i}, s{sNON}, v{129+2*i}\n"
body += "v_or3_b32 v144, v144, v145, v146\nv_or3_b32 v147, v147, v148, v149\nv_or3_b32 v144, v144, v150, v151\nv_or_b32 v144, v144, v147\nv_cmp_ne_u32 vcc, 0, v144"
spin(body, "s_cbranch_vccz")
stamp(8)
for i in range(4):
    for q in range(4):
        a(f"ds_write_b16{'_d16_hi' if q % 2 else ''} v{50+i//2}, v{128+4*i+2*(q//2)} offset:{128*q + 8*(i%2)}")

a(f"""L_final:
v_lshrrev_b32 v17, 3, v0
v_and_b32 v16, 7, v0
s_lshr_b32 s{sT0}, s{sW}, 1
s_and_b32 s{sT1}, s{sW}, 1
s_lshl3_add_u32 s{sT0}, s{sT0}, s{sT1}
s_lshl_b32 s{sT0}, s{sT0}, 11
s_add_u32 s{sT0}, s{sT0}, {5*UNIT}
v_lshlrev_b32 v22, 1, v16
v_xor_b32 v22, v22, v17
v_lshl_add_u32 v22, v22, 4, s{sT0}
v_lshl_add_u32 v22, v17, 8, v22
v_xor_b32 v23, 16, v22
v_xor_b32 v24, s{sW}, v16
s_lshl_b32 s{sT0}, s{sW}, 10
s_add_u32 s{sT0}, s{sT0}, {ATL}
v_lshl_add_u32 v24, v24, 4, s{sT0}
v_lshl_add_u32 v24, v17, 7, v24
s_lshl_b32 s{sT0}, s{sW}, 5
s_add_u32 s{sT0}, s{sT0}, {GL}
v_lshl_add_u32 v25, v17, 2, s{sT0}
v_and_b32 v26, 3, v17
v_lshrrev_b32 v27, 2, v17
v_lshl_add_u32 v26, v26, 6, v27
v_mul_u32_u24 v26, 896, v26
v_lshl_add_u32 v26, v16, 4, v26
s_lshl4_add_u32 s{sT0}, s{sX}, s{sJQ}
s_lshl3_add_u32 s{sT0}, s{sT0}, s{sW}
s_mul_i32 s{sT0}, s{sT0}, 14
s_add_u32 s{sT0}, s{sT0}, s{sJR}
s_lshl_b32 s{sT0}, s{sT0}, 7
""")
stamp(10)
a("s_waitcnt lgkmcnt(0)\ns_barrier")
stamp(11)
for w in range(4):
    a(f"ds_read_b128 {v(32+8*w,4)}, v22 offset:{4096*w}\nds_read_b128 {v(36+8*w,4)}, v23 offset:{4096*w}")
a("ds_read_b128 v[64:67], v24\nds_read_b32 v68, v25\ns_waitcnt lgkmcnt(6)")
for e in range(0, 8, 2): a(f"v_pk_add_f32 {v(32+e,2)}, {v(32+e,2)}, {v(40+e,2)}")
a("s_waitcnt lgkmcnt(2)")
for e in range(0, 8, 2): a(f"v_pk_add_f32 {v(48+e,2)}, {v(48+e,2)}, {v(56+e,2)}")
for e in range(0, 8, 2): a(f"v_pk_add_f32 {v(32+e,2)}, {v(32+e,2)}, {v(48+e,2)}")
a("s_waitcnt lgkmcnt(0)")
for e in range(8):
    if e % 2 == 0: a(f"v_lshlrev_b32 v{40+e}, 16, v{64+e//2}")
    else: a(f"v_and_b32 v{40+e}, 0xffff0000, v{64+e//2}")
for e in range(0, 8, 2): a(f"v_pk_add_f32 {v(40+e,2)}, {v(40+e,2)}, {v(32+e,2)} neg_lo:[0,1] neg_hi:[0,1]")
for e in range(0, 8, 2): a(f"v_pk_fma_f32 {v(32+e,2)}, {v(40+e,2)}, v[68:69], {v(32+e,2)} op_sel:[0,0,0] op_sel_hi:[1,0,1]")
for e in range(4): a(f"v_cvt_pk_bf16_f32 v{48+e}, v{32+2*e}, v{33+2*e}")
a(f"buffer_store_dwordx4 v[48:51], v26, {s(R_OUT,4)}, s{sT0} offen")
stamp(12)
dump_stamps()
a("L_exit:\ns_endpgm")

sH = 83
HR = 912
HST = 64*HR
a("L_helper:")
if CODEPF:
    a(f"""s_cmp_lg_u32 s{sW}, 1
s_cbranch_scc1 L_nopf
s_getpc_b64 s[90:91]
L_pc:
s_sub_u32 s90, s90, L_pc-{NAME}_kernel
s_subb_u32 s91, s91, 0
s_and_b32 s{sT0}, s{sJ}, 3
v_lshl_add_u32 v2, v0, 2, s{sT0}
v_lshlrev_b32 v2, 7, v2
v_min_u32 v2, L_codeend-{NAME}_kernel-4, v2
global_load_dword v4, v2, s[90:91]
L_nopf:
""")
a(f"""s_and_b32 s{sH}, s{sJ}, 3
s_lshl2_add_u32 s{sH}, s{sX}, s{sH}
v_mov_b32 v2, 0
v_lshlrev_b32 v3, 4, v0
v_lshlrev_b32 v7, 2, v0
s_lshl3_add_u32 s{sT0}, s{sH}, s{sW}
s_mul_i32 s{sT0}, s{sT0}, {8*896}
s_mul_i32 s{sT1}, s{sW}, {8*HR}
v_and_b32 v5, 7, v0
v_lshlrev_b32 v5, 4, v5
s_waitcnt lgkmcnt(0)
""")
if PROF: a(f"v_mov_b32 v{VP}, 0\nv_writelane_b32 v{VP}, s100, 0")
srd(R_X, P_U, 2048*896); srd(R_WS, P_WS, WS_USED); srd(R_WD, P_WD, 1792*896)
a(f"""s_or_b32 s{sT3}, s{sH}, s{sW}
s_cmp_lg_u32 s{sT3}, 0
s_cbranch_scc1 L_h_non
buffer_load_dword v4, v2, {s(R_WS,4)}, 0 offen sc1
s_waitcnt vmcnt(0)
v_add_u32 v4, 1, v4
v_max_u32 v4, 1, v4
global_store_dword v2, v4, {s(P_DBG,2)} sc1
buffer_store_dword v4, v2, {s(R_WS,4)}, 0 offen sc1
L_h_non:
""")
touches = []
if HELP_WD:
    a(f"""v_lshlrev_b32 v17, 7, v0
s_and_b32 s84, s{sJ}, 3
s_lshl2_add_u32 s84, s{sW}, s84
s_mul_i32 s85, s{sX}, 12
s_add_u32 s84, s84, s85
""")
    for p in [[1], [0, 1], [1, 0]][HELP_WD - 1]:
        for r in range(3):
            touches.append(f"""s_add_u32 s85, s84, {32*r}
s_sub_u32 s86, s85, 98
s_cselect_b32 s85, s85, s86
s_mul_i32 s86, s85, 147
s_lshr_b32 s86, s86, 10
s_mul_i32 s86, s86, 7
s_add_u32 s85, s85, s86
s_add_u32 s85, s85, {7*p}
s_lshl_b32 s85, s85, 13
buffer_load_dword v16, v17, {s(R_WD,4)}, s85 offen""")
for _ in range(opt("ht0", 0) if HELP_WD else 0): a(touches.pop(0))
a("s_mov_b32 exec_hi, 0x00ffffff")
for i in range(8):
    a(f"s_add_u32 m0, s{sT1}, {HR*i}")
    if i: a(f"s_add_u32 s{sT0}, s{sT0}, 896")
    a(f"buffer_load_dwordx4 v3, {s(R_X,4)}, s{sT0} offen lds")
a("s_mov_b32 exec_hi, -1")
for i in range(7): a(f"global_load_dwordx4 {v(32+4*i,4)}, v5, {s(P_GW,2)} offset:{128*i}")
HTM = opt("htm", 1) if HELP_WD else 0
for _ in range(HTM): a(touches.pop(0))
a(f"""; tr address: (4*(8half + rho) + r)*HR + (16G + 4c)*2
v_bfe_u32 v8, v0, 2, 2
v_mul_u32_u24 v8, {4*HR}, v8
v_lshrrev_b32 v9, 4, v0
v_lshl_add_u32 v8, v9, 5, v8
v_and_b32 v9, 3, v0
v_lshl_add_u32 v8, v9, 3, v8
s_lshr_b32 s{sT0}, s{sW}, 2
s_mul_i32 s{sT1}, s{sT0}, {32*HR}
s_and_b32 s{sT3}, s{sW}, 3
s_mul_i32 s{sT2_}, s{sT3}, {HR}
s_add_u32 s{sT1}, s{sT1}, s{sT2_}
v_add_u32 v8, s{sT1}, v8
s_lshl1_add_u32 s{sT0}, s{sT3}, s{sT0}
v_and_b32 v13, 7, v0
v_xor_b32 v13, s{sT0}, v13
v_lshlrev_b32 v13, 4, v13
v_lshl_add_u32 v13, v0, 7, v13
v_add_u32 v13, {HST}, v13
s_lshl_b32 s{sT1}, s{sW}, 10
s_mul_i32 s{sT0}, s{sH}, 57344
s_add_u32 s{sT0}, s{sT0}, s{sT1}
s_add_u32 s{sT0}, s{sT0}, {WS_UT}
s_add_u32 s{sT1}, s{sT1}, {HST}
v_add_u32 v14, s{sT1}, v3
v_lshrrev_b32 v9, 3, v0
s_lshl_b32 s{sT1}, s{sW}, 3
v_add_u32 v9, s{sT1}, v9
v_mul_u32_u24 v10, {HR}, v9
v_add_u32 v10, v10, v5
v_lshlrev_b32 v9, 2, v9
v_mov_b32 v11, 0
v_mov_b32 v12, 0
s_waitcnt vmcnt({HTM})
s_barrier
""")
stamp(1)
nonce_issue(4, 2)
for i in range(7):
    a(f"ds_read_b64_tr_b16 {v(64+4*i,2)}, v8 offset:{128*i}\nds_read_b64_tr_b16 {v(66+4*i,2)}, v8 offset:{128*i + 16*HR}")
for i in range(7):
    a(f"s_waitcnt lgkmcnt({12-i})\nds_write_b128 v13, {v(64+4*i,4)} offset:{8192*i}")
for i in range(7): a(f"ds_read_b128 {v(96+4*i,4)}, v10 offset:{128*i}")
a("s_waitcnt lgkmcnt(7)\ns_barrier")
fstamp(4)
for i in range(7): a(f"ds_read_b128 {v(64+4*i,4)}, v14 offset:{8192*i}")
for i in range(7):
    a(f"s_waitcnt lgkmcnt({6-i})")
    if i: a(f"s_add_u32 s{sT0}, s{sT0}, 8192")
    a(f"buffer_store_dwordx4 {v(64+4*i,4)}, v3, {s(R_WS,4)}, s{sT0} offen sc1")
fstamp(5)
for i in range(14):
    a(f"v_dot2_f32_bf16 v11, v{96+2*i}, v{32+2*i}, v11\nv_dot2_f32_bf16 v12, v{97+2*i}, v{33+2*i}, v12")
a(f"""v_add_f32 v11, v11, v12
v_add_f32_dpp v11, v11, v11 quad_perm:[1,0,3,2] row_mask:0xf bank_mask:0xf
v_add_f32_dpp v11, v11, v11 quad_perm:[2,3,0,1] row_mask:0xf bank_mask:0xf
v_add_f32_dpp v11, v11, v11 row_half_mirror row_mask:0xf bank_mask:0xf
v_mul_f32 v11, {f32(-LOG2E)}, v11
v_exp_f32 v11, v11
v_add_f32 v11, 1.0, v11
v_rcp_f32 v11, v11
s_lshl_b32 s{sT1}, s{sH}, 8
s_add_u32 s{sT1}, s{sT1}, {WS_G}
buffer_store_dword v11, v9, {s(R_WS,4)}, s{sT1} offen sc1
""")
HT1 = opt("ht1", 0) if HELP_WD else 0
for _ in range(HT1): a(touches.pop(0))
a(f"s_waitcnt vmcnt({HT1})")
fstamp(6)
a(f"""s_barrier
s_cmp_lg_u32 s{sW}, 0
s_cbranch_scc1 L_h_end
""")
nonce_check(4, 2)
a(f"""s_lshl_b32 s{sT1}, s{sH}, 8
s_add_u32 s{sT1}, s{sT1}, {WS_FLAGU}
buffer_store_dword v4, v7, {s(R_WS,4)}, s{sT1} offen sc1
L_h_end:
s_barrier
""")
stamp(2)
for t in touches: a(t)
if PROF: a("s_waitcnt vmcnt(0)")
stamp(3)
dump_stamps()
a("s_endpgm\nL_codeend:")

hdr = open("cdna_kernels/" + NAME + ".s.ref").read().split("; @launch")[0]
txt = hdr + f"""; @launch grid=(256,1,1) block=(512,1,1) lds=163840
.amdgcn_target "amdgcn-amd-amdhsa--gfx950"
.text
.globl {NAME}_kernel
.p2align 8
.type {NAME}_kernel,@function
""" + a.text() + f""".section .rodata,"a"
.p2align 6
.amdhsa_kernel {NAME}_kernel
  .amdhsa_next_free_vgpr 256
  .amdhsa_next_free_sgpr 102
  .amdhsa_accum_offset 256
  .amdhsa_group_segment_fixed_size 0
  .amdhsa_kernarg_size 136
  .amdhsa_user_sgpr_count 2
  .amdhsa_user_sgpr_kernarg_segment_ptr 1
  .amdhsa_system_sgpr_workgroup_id_x 1
.end_amdhsa_kernel
"""
open(OUT, "w").write(txt)
print("wrote", OUT, "instructions:", len(a.ins))
```

```python
import sys, math, struct
from asmlib import Asm, v, s

NAME = "gated_mix__ssm_conv_s4__glu_gated_glu__prompt"
PROF = "--prof" in sys.argv
DUMPK = "--dumpk" in sys.argv
FINE = "--fine" in sys.argv
G2S = "--g2s" in sys.argv
def opt(name, dflt):
    for x in sys.argv:
        if x.startswith("--" + name + "="): return int(x.split("=")[1])
    return dflt
OUT = [a for a in sys.argv[1:] if a.endswith(".s")]
OUT = OUT[0] if OUT else "cdna_kernels/" + NAME + ".s"
TOUCH_WA = opt("twa", 1); TOUCH_WB = opt("twb", 1); HELP_WD = opt("hwd", 2); HELP_MALL = opt("hmall", 0); CODEPF = opt("cpf", 1)
PR_KS = opt("prks", 1)
PR_G1 = opt("prg1", 0)
PR_LD = opt("prld", 0)
PR_CV = opt("prcv", 0)
PR_G2 = opt("prg2", 1)

WS_FLAGU = 0x1000
WS_G = 0x4000
WS_FLAGH = 0x50000
WS_UT = 0x100000
WS_AT = 0x300000
WS_H = 0x700000
WS_DBG = 0xE00000
WS_STAMP = 0x1000000
WS_USED = 0x1200000 if (PROF or DUMPK) else 0xE00000
UNIT = 16384
RING = 7 * UNIT
SCR = 3 * UNIT
SB = 3 * UNIT
RS = 1216
UB = SB
KB = SB + 8 * RS
KS = 4160
XCH = SB + 18432
CNT = XCH + 2048
GL = CNT + 256
ATL = SB + 21504
UNIT_OF = [7, 2, 8, 0, 9, 5, 6, 1, 7, 2, 8, 0, 9, 5]
WUNIT = [7, 8, 9, 7, 8, 9, 7, 8, 9, 7, 8, 0, 9, 1]
SPIN = 4000

sW, sX, sJ, sJQ, sJR, sW4 = 3, 4, 5, 6, 7, 8
sT0, sT1, sT2_, sT3, sCNT, sWK, sWK4 = 9, 10, 11, 12, 13, 14, 15
P_U, P_ARE, P_AIM, P_BRE, P_BIM, P_CRE, P_CIM, P_LDT, P_DSK, P_BX, P_WG, P_WU, P_WD, P_GW, P_OUT, P_DBG, P_WS = range(16, 50, 2)
sNON = 50
R_X, R_WG, R_WU, R_WD, R_WS, R_OUT = 52, 56, 60, 64, 68, 72
sPI = 76
sLB, sFB, sT2, sPAIR, sNL2E, sCH, sSC = 83, 84, 85, 86, 87, 88, 89
sTB = 90
sIT, sRG, sHS, sFS, sHL = 94, 95, 96, 97, 98
LOG2E = 1.4426950408889634
def f32(x): return "0x%08x" % struct.unpack("<I", struct.pack("<f", x))[0]

a = Asm()
VP = 31
def stamp(i):
    if PROF: a(f"s_memtime s[92:93]\ns_waitcnt lgkmcnt(0)\nv_writelane_b32 v{VP}, s92, {i}")
def fstamp(i):
    if FINE: stamp(i)
DBGWG = opt("dbgwg", -1)
def dump_stamps():
    if PROF and DBGWG >= 0:
        L = a.label("nodbg")
        a(f"""s_lshl_b32 s92, s2, 3
s_add_u32 s92, s92, s{sW}
s_cmp_lg_u32 s92, {DBGWG}
s_cbranch_scc1 {L}
v_readlane_b32 s92, v{VP}, 0
v_lshlrev_b32 v1, 2, v0
v_subrev_u32 v{VP}, s92, v{VP}
s_mov_b64 exec, 0xfffe
global_store_dword v1, v{VP}, {s(P_DBG,2)}
{L}:""")
    elif PROF:
        a(f"""s_lshl_b32 s92, s2, 3
s_add_u32 s92, s92, s{sW}
s_lshl_b32 s92, s92, 8
s_add_u32 s92, s92, {WS_STAMP}
v_lshlrev_b32 v1, 2, v0
buffer_store_dword v{VP}, v1, {s(R_WS,4)}, s92 offen""")
def srd(r, p, n):
    a(f"s_mov_b64 {s(r,2)}, {s(p,2)}\ns_mov_b32 s{r+2}, {n}\ns_mov_b32 s{r+3}, 0x20000")
def prio(p, cur=None):
    a(f"s_setprio {p}")
def cmul(d, x, m, t, conj=False):
    i1 = f"v_pk_mul_f32 {v(t,2)}, {v(x,2)}, {v(m,2)} op_sel:[0,0] op_sel_hi:[0,1]" + (" neg_hi:[0,1]" if conj else "")
    i2 = f"v_pk_fma_f32 {v(d,2)}, {v(x,2)}, {v(m,2)}, {v(t,2)} op_sel:[1,1,0] op_sel_hi:[1,0,1]" + ("" if conj else " neg_lo:[1,0,0]")
    return i1, i2
def cmuls(lst, temps):
    pairs = [cmul(d, x, m, temps[i], cj) for i, (d, x, m, cj) in enumerate(lst)]
    for p in pairs: a(p[0])
    for p in pairs: a(p[1])
def spin(body, done_branch, n=SPIN):
    L = a.label("spin"); E = a.label("spinend")
    a(f"s_mov_b32 s{sCNT}, {n}\n{L}:\n{body}\n{done_branch} {E}\ns_sub_u32 s{sCNT}, s{sCNT}, 1\ns_cbranch_scc0 {L}\n{E}:")
def check_or_poll(vdst, voff, off):
    E = a.label("ok")
    a(f"v_cmp_ne_u32 vcc, s{sNON}, v{vdst}\ns_cbranch_vccz {E}")
    spin(f"buffer_load_dword v{vdst}, v{voff}, {s(R_WS,4)}, 0 offen offset:{off} sc1\ns_waitcnt vmcnt(0)\nv_cmp_ne_u32 vcc, s{sNON}, v{vdst}", "s_cbranch_vccz")
    a(f"{E}:")
def nonce_issue(vdst, vzero): a(f"global_load_dword v{vdst}, v{vzero}, {s(P_DBG,2)} sc1")
def nonce_check(vdst, vzero):
    E = a.label("nonok")
    a(f"v_readfirstlane_b32 s{sNON}, v{vdst}\ns_cmp_lg_u32 s{sNON}, 0\ns_cbranch_scc1 {E}")
    spin(f"global_load_dword v{vdst}, v{vzero}, {s(P_DBG,2)} sc1\ns_waitcnt vmcnt(0)\nv_readfirstlane_b32 s{sNON}, v{vdst}\ns_cmp_lg_u32 s{sNON}, 0", "s_cbranch_scc1")
    a(f"{E}:")
def lds_cnt_wait(vtmp, vaddr, off, target):
    spin(f"ds_read_b32 v{vtmp}, v{vaddr} offset:{off}\ns_waitcnt lgkmcnt(0)\nv_readfirstlane_b32 s{sT0}, v{vtmp}\ns_cmp_ge_u32 s{sT0}, {target}", "s_cbranch_scc1", SPIN*8)

HEAVY = opt("heavy", 0)
if HEAVY:
    UNIT_OF = [7, 2, 8, 0, 9, 5, 6, 1]; WUNIT = [7, 8, 9, 7, 8, 9, 7, 8, 9, 7, 8, 0, 9, 1]
    PB_DMA = {8: [("w", 10), ("w", 11)], 9: [("w", 12), ("w", 13)], 10: [("wd", 0), ("wd", 1)], 11: [("wd", 2)], 12: [("wd", 3)]}
else:
    UNIT_OF = [0, 1, 2, 9, 7, 5, 6, 8]; WUNIT = [7, 8, 9, 7, 8, 9, 7, 8, 9, 7, 8, 9, 7, 8]
    PB_DMA = {8: [("w", 10)], 9: [("w", 11)], 10: [("w", 12)], 11: [("w", 13), ("wd", 0), ("wd", 1)], 12: [("wd", 2), ("wd", 3)]}
UNIT_OF = UNIT_OF + UNIT_OF[:6]
sUT = 77
PR_MM = opt("prmm", 2)
PR_EB = opt("preb", 2)
KP = 128
vXA, vWA, vL16, vFLG, vPOL, vWdD, vWB = 1, 5, 6, 7, 8, 9, 10
vWA0, vDSK, vWDm = 12, 13, 30
vKW, vKR, vKR2, vPW, vXD, vTW = 38, 135, 42, 43, 44, 45
F0, F1, ACC = 32, 48, 64
a(f"""{NAME}_kernel:
s_cmp_ge_u32 s2, 256
s_cbranch_scc1 L_exit
s_load_dwordx16 s[16:31], s[0:1], 0
s_load_dwordx16 s[32:47], s[0:1], 64
s_load_dwordx2 s[48:49], s[0:1], 128
""" + ("s_memtime s[100:101]\n" if PROF else "") + f"""
v_lshrrev_b32 v1, 6, v0
v_and_b32 v0, 63, v0
v_readfirstlane_b32 s{sW}, v1
s_and_b32 s{sX}, s2, 7
s_lshr_b32 s{sJ}, s2, 3
s_cmp_ge_u32 s{sJ}, 28
s_cbranch_scc1 L_helper
s_mul_i32 s{sPAIR}, s{sX}, 28
s_add_u32 s{sPAIR}, s{sPAIR}, s{sJ}
s_bfe_u32 s{sCH}, s{sW}, 0x10001
; state = 64*quarter + lane ; quarter = (w&1) + 2*(w>>2)
s_and_b32 s{sT0}, s{sW}, 1
s_lshr_b32 s{sT1}, s{sW}, 2
s_lshl1_add_u32 s{sT0}, s{sT1}, s{sT0}
s_lshl1_add_u32 s{sT1}, s{sPAIR}, s{sCH}
s_lshl2_add_u32 s{sT0}, s{sT1}, s{sT0}
s_lshl_b32 s{sT0}, s{sT0}, 7
s_lshl_b32 s{sT3}, s{sT1}, 1
v_lshl_add_u32 v16, v0, 1, s{sT0}
v_mov_b32 v11, s{sT3}
v_mov_b32 v{vDSK}, 0
v_mov_b64 v[{KP}:{KP+1}], 0
v_mov_b64 v[{KP+2}:{KP+3}], 0
v_mov_b64 v[{KP+4}:{KP+5}], 0
v_mov_b32 v{KP+6}, 0
s_mul_i32 s{sJQ}, s{sJ}, 37
s_lshr_b32 s{sJQ}, s{sJQ}, 8
s_mul_i32 s{sT0}, s{sJQ}, 7
s_sub_u32 s{sJR}, s{sJ}, s{sT0}
s_and_b32 s{sW4}, s{sW}, 3
s_and_b32 s{sLB}, s{sX}, 6
s_lshl1_add_u32 s{sLB}, s{sLB}, s{sJQ}
s_and_b32 s{sFB}, s{sX}, 1
s_mul_i32 s{sFB}, s{sFB}, 7
s_add_u32 s{sFB}, s{sFB}, s{sJR}
; rotation table: nibble i = (2jq + jr + i) mod 7
s_lshl1_add_u32 s{sT0}, s{sJQ}, s{sJR}
s_sub_u32 s{sT1}, s{sT0}, 7
s_cselect_b32 s{sT0}, s{sT0}, s{sT1}
s_lshl_b32 s{sT0}, s{sT0}, 2
s_mov_b32 s{sPI}, 0x06543210
s_mov_b32 s{sPI+1}, 0x00654321
s_lshr_b64 {s(sPI,2)}, {s(sPI,2)}, s{sT0}
s_lshl_b32 s{sWK}, s{sW4}, 10
v_lshrrev_b32 v17, 3, v0
v_and_b32 v18, 7, v0
; X: row l = 256*(lb>>1) + 32*(lb&1) + 2w + (r8>>2) + 64*(r8&3) (+8i); chunk c = c' ^ (4*(w&1) + (r8>>1))
v_and_b32 v20, 3, v17
v_lshrrev_b32 v21, 2, v17
v_lshl_add_u32 v20, v20, 6, v21
s_lshr_b32 s{sT0}, s{sLB}, 1
s_and_b32 s{sT1}, s{sLB}, 1
s_lshl3_add_u32 s{sT0}, s{sT0}, s{sT1}
s_lshl4_add_u32 s{sT0}, s{sT0}, s{sW4}
s_lshl_b32 s{sT0}, s{sT0}, 1
v_add_u32 v20, s{sT0}, v20
v_mul_u32_u24 v20, 896, v20
s_and_b32 s{sT1}, s{sW4}, 1
s_lshl_b32 s{sT1}, s{sT1}, 2
v_lshrrev_b32 v21, 1, v17
v_xor_b32 v21, v21, v18
v_xor_b32 v21, s{sT1}, v21
v_lshl_add_u32 v{vXD}, v21, 4, v20
; W: (8w + r8)*3584 + (c' ^ 4*((r8>>1)&1))*16 + fb*256
v_lshlrev_b32 v19, 1, v17
v_and_b32 v19, 4, v19
v_xor_b32 v19, v19, v18
v_lshlrev_b32 v19, 4, v19
s_lshl_b32 s{sT0}, s{sW4}, 3
v_add_u32 v20, s{sT0}, v17
v_mul_u32_u24 v20, 3584, v20
s_lshl_b32 s{sT2_}, s{sFB}, 8
v_add3_u32 v{vWDm}, v20, v19, s{sT2_}
s_mov_b32 s{R_X+2}, {2048*896}
s_mov_b32 s{R_X+3}, 0x20000
s_mov_b32 s{R_WG+2}, {448*3584}
s_mov_b32 s{R_WG+3}, 0x20000
s_mov_b64 {s(R_WU+2,2)}, {s(R_WG+2,2)}
s_mov_b64 {s(R_WD+2,2)}, {s(R_WG+2,2)}
s_mov_b64 {s(R_OUT+2,2)}, {s(R_X+2,2)}
s_mov_b32 s{R_WS+2}, {WS_USED}
s_mov_b32 s{R_WS+3}, 0x20000
s_waitcnt lgkmcnt(0)
""")
for i, p in enumerate([P_ARE, P_AIM, P_BRE, P_BIM, P_CRE, P_CIM]):
    a(f"global_load_short_d16_hi v{KP+i}, v16, {s(p,2)}")
a(f"global_load_short_d16_hi v{KP+6}, v11, {s(P_LDT,2)}")
a(f"global_load_short_d16_hi v{vDSK}, v11, {s(P_DSK,2)}")
for r, p in [(R_X, P_U), (R_WG, P_WG), (R_WU, P_WU), (R_WD, P_WD), (R_WS, P_WS), (R_OUT, P_OUT)]:
    a(f"s_mov_b64 {s(r,2)}, {s(p,2)}")
if PROF: a(f"v_mov_b32 v{VP}, 0\nv_writelane_b32 v{VP}, s100, 0")
if not FINE: stamp(14)
def pi(dst, i): return f"s_bfe_u32 s{dst}, s{sPI}, {hex(0x40000 + 4*i)}"
def dma_x_list(slot):
    out = []
    for i in range(4):
        g = [f"s_add_u32 m0, s{sWK}, {slot*UNIT + i*4096}"]
        g.append(f"s_add_u32 s78, s78, 7168" if i else pi(78, slot) + f"\ns_lshl_b32 s78, s78, 7")
        g.append(f"buffer_load_dwordx4 v{vXD}, {s(R_X,4)}, s78 offen lds")
        out.append("\n".join(g))
    return out
sD0, sD1 = 78, 79
def dma_w_list(g):
    p, i7 = divmod(g, 7)
    out = []
    for up in range(2):
        for i in range(2):
            x = [f"s_add_u32 m0, s{sWK}, {WUNIT[g]*UNIT + up*8192 + i*4096}"]
            if up == 0 and i == 0:
                x.append(pi(sD0, i7) + f"\ns_mul_i32 s{sD0}, s{sD0}, {64*3584}")
                if p: x.append(f"s_add_u32 s{sD0}, s{sD0}, 128")
            if up == 0 and i == 1: x.append(f"s_add_u32 s{sD1}, s{sD0}, {32*3584}")
            x.append(f"buffer_load_dwordx4 v{vWDm}, {s(R_WU if up else R_WG,4)}, s{sD1 if i else sD0} offen lds")
            out.append("\n".join(x))
    return out
def dma_wd_list(n):
    p, i7 = divmod(n, 7)
    out = []
    for i in range(4):
        g = [f"s_add_u32 m0, s{sWK4}, {UNIT_OF[n]*UNIT + i*1024}"]
        if i == 0:
            g.append(pi(sD0, i7) + f"\ns_mul_i32 s{sD0}, s{sD0}, {128*896}")
            if p: g.append(f"s_add_u32 s{sD0}, s{sD0}, {64*896}")
        else:
            g.append(f"s_add_u32 s{sD0}, s{sD0}, 7168")
        g.append(f"buffer_load_dwordx4 v{vWdD}, {s(R_WD,4)}, s{sD0} offen lds")
        out.append("\n".join(g))
    return out
def emit(lst):
    for x in lst: a(x)
    return len(lst)
sROLE = 80
a(f"s_cmp_lt_u32 s{sW}, 4\ns_cselect_b32 s{sROLE}, 0, 1")
a(f"""
v_lshlrev_b32 v{vL16}, 4, v0
s_lshl_b32 s{sSC}, s{sW}, 13
s_add_u32 s{sSC}, s{sSC}, {SCR}
v_lshl_add_u32 v{vKW}, v0, 6, s{sSC}
v_bfe_u32 v20, v0, 1, 2
v_lshl_add_u32 v{vKW}, v20, 4, v{vKW}
v_xor_b32 v{vKW+1}, 16, v{vKW}
v_xor_b32 v{vKW+2}, 32, v{vKW}
v_xor_b32 v{vKW+3}, 48, v{vKW}
v_bfe_u32 v20, v0, 2, 2
v_lshrrev_b32 v21, 5, v0
v_lshl_add_u32 v20, v21, 3, v20
v_lshl_add_u32 v{vKR}, v20, 6, s{sSC}
v_bfe_u32 v20, v0, 4, 1
v_bfe_u32 v21, v0, 1, 1
v_lshl_add_u32 v20, v20, 1, v21
v_bfe_u32 v21, v0, 3, 1
v_xor_b32 v20, v20, v21
v_lshl_add_u32 v{vKR}, v20, 4, v{vKR}
v_and_b32 v20, 1, v0
v_lshl_add_u32 v{vKR}, v20, 3, v{vKR}
v_xor_b32 v{vKR2}, 32, v{vKR}
v_add_u32 v{vPW}, s{sSC}, v{vL16}
v_mov_b32 v146, 1.0
v_mov_b32 v147, 0
""")
def g1_zero():
    for r in range(F1, F1+16, 2): a(f"v_mov_b64 {v(r,2)}, 0")
    for i in range(4): a(f"v_mfma_f32_32x32x16_bf16 {v(ACC+16*i,16)}, {v(F1,4)}, {v(F1,4)}, 0")
def g1_setup(p):
    tab = sum(WUNIT[7*p + i] << (4*i) for i in range(7))
    a(f"v_and_b32 v22, 31, v0\nv_lshrrev_b32 v20, 5, v0")
    a(f"""s_and_b32 s{sT0}, s{sW4}, 1
s_lshl_b32 s{sT1}, s{sT0}, 13
v_lshl_add_u32 v21, v22, 7, s{sT1}
v_bfe_u32 v22, v0, 1, 3
v_xor_b32 v22, v22, v20
v_lshl_add_u32 v{vXA}, v22, 4, v21
v_xor_b32 v{vXA+1}, 32, v{vXA}
v_xor_b32 v{vXA+2}, 64, v{vXA}
v_xor_b32 v{vXA+3}, 96, v{vXA}
v_bfe_u32 v21, v0, 2, 2
v_and_b32 v22, 3, v0
v_lshlrev_b32 v22, 3, v22
v_bfe_u32 v23, v0, 4, 1
v_lshl_add_u32 v22, v23, 5, v22
v_lshl_add_u32 v22, v21, 7, v22
v_bfe_u32 v23, v0, 3, 1
v_lshl_add_u32 v22, v23, 6, v22
v_lshl_add_u32 v23, v20, 10, v22
s_lshr_b32 s{sT1}, s{sW4}, 1
s_lshl_b32 s{sT3}, s{sT1}, 6
v_xor_b32 v{vWA0}, s{sT3}, v23
v_add_u32 v{vWA}, {WUNIT[7*p]*UNIT}, v{vWA0}
v_lshl_add_u32 v{vWB}, v20, 9, v22
v_lshlrev_b32 v{vFLG}, 2, v0
s_mov_b32 s{sIT}, 7
s_mov_b32 s{sUT}, {hex(tab)}
s_mov_b32 s{sNL2E}, {f32(-LOG2E)}
s_lshl1_add_u32 s{sT0}, s{sLB}, s{sT0}
s_mul_i32 s{sT0}, s{sT0}, 14
s_add_u32 s{sT0}, s{sT0}, s{sFB}
s_lshl2_add_u32 s{sT0}, s{sT0}, s{sT1}
s_lshl_b32 s{sHS}, s{sT0}, 12
s_add_u32 s{sHS}, s{sHS}, {WS_H + 8192*p}
s_lshl_b32 s{sFS}, s{sT0}, 8
s_add_u32 s{sFS}, s{sFS}, {WS_FLAGH + 512*p}
""")
sROLE = 80
g1_zero()
a(f"""s_cmp_eq_u32 s{sROLE}, 0
s_cbranch_scc1 L_kw0
""")
a(f"""; W touch: rows jq*112 + 56*(w>>1) + min(lane,55), matrix w&1
v_min_u32 v{vTW}, 55, v0
s_lshr_b32 s{sT1}, s{sW4}, 1
s_lshl1_add_u32 s{sT0}, s{sJQ}, s{sT1}
s_mul_i32 s{sT0}, s{sT0}, 56
v_add_u32 v{vTW}, s{sT0}, v{vTW}
v_mul_u32_u24 v{vTW}, 3584, v{vTW}
v_add_u32 v{vTW}, s{sT2_}, v{vTW}
s_bitcmp1_b32 s{sW}, 0
s_cselect_b64 {s(sTB,2)}, {s(P_WU,2)}, {s(P_WG,2)}
""")
if opt("b1w", 0): a("s_waitcnt vmcnt(0)")
emit(dma_x_list(0)); emit(dma_w_list(0))
NB1 = 8
if TOUCH_WA:
    a(f"global_load_dword v46, v{vTW}, {s(sTB,2)}"); NB1 = 9
if PR_KS: prio(PR_KS)
a(f"""s_waitcnt vmcnt({NB1})
s_branch L_kgen
L_kw0:
v_mul_u32_u24 v20, 896, v17
s_lshr_b32 s{sT0}, s{sW4}, 1
s_mul_i32 s{sT0}, s{sT0}, 28
s_and_b32 s{sT1}, s{sW4}, 1
s_add_u32 s{sT0}, s{sT0}, s{sT1}
s_mul_i32 s{sT0}, s{sT0}, {32*7}
s_add_u32 s{sT0}, s{sT0}, s{sJR}
s_lshl_b32 s{sT0}, s{sT0}, 7
v_add3_u32 v{vWdD}, v19, v20, s{sT0}
s_lshl_b32 s{sWK4}, s{sW4}, 12
""")
g1_setup(0)
if not FINE: a("s_waitcnt vmcnt(2)"); stamp(15)
a("s_waitcnt vmcnt(0)")
a("L_kgen:")
stamp(1)
ARE, AIM, BRE, CRE = KP, KP+1, KP+2, KP+4
vDT = 134; E1, E2, E4, WC, W2, BE, BO = 136, 138, 140, 142, 144, 146, 148
TT = [150, 152, 154, 156, 158]
PX = {0: 16, 1: 18, 2: 20, 3: 22, 4: 24, 5: 26, 6: 28, 7: 130, 8: 132}
STG = [160, 168]
DACC, BFR, AFR = 176, 192, 224
c1, c2 = cmul(PX[0], CRE, BRE, 158)
a(f"""v_mul_f32 v{vDT}, {f32(LOG2E)}, v{vDT}
v_exp_f32 v{vDT}, v{vDT}
{c1}
v_cvt_pk_bf16_f32 v{vDT}, v{vDT}, v{vDT}
{c2}
v_lshlrev_b32 v{vDT}, 16, v{vDT}
v_mul_f32 v150, {f32(LOG2E)}, v{vDT}
v_mul_f32 v151, {f32(1/(2*math.pi))}, v{vDT}
v_pk_mul_f32 {v(ARE,2)}, {v(ARE,2)}, v[150:151]
v_pk_mul_f32 {v(PX[0],2)}, {v(PX[0],2)}, {v(vDT,2)} op_sel:[0,0] op_sel_hi:[1,0]
v_mul_f32 v153, 0x41000000, v{AIM}
v_mul_f32 v152, 0x41000000, v{ARE}
v_fract_f32 v153, v153
v_exp_f32 v152, v152
v_cos_f32 v{WC}, v153
v_sin_f32 v{WC+1}, -v153
v_fract_f32 v155, v{AIM}
v_pk_mul_f32 {v(BO,2)}, {v(WC,2)}, v[152:153] op_sel:[0,0] op_sel_hi:[1,0]
v_pk_mul_f32 {v(WC,2)}, {v(WC,2)}, v[152:153] op_sel:[0,0] op_sel_hi:[1,0]
v_exp_f32 v154, v{ARE}
v_cos_f32 v{E1}, v155
v_sin_f32 v{E1+1}, v155
""")
c1, c2 = cmul(W2, WC, WC, 156)
a(f"{c1}\nv_pk_mul_f32 {v(E1,2)}, {v(E1,2)}, v[154:155] op_sel:[0,0] op_sel_hi:[1,0]\n{c2}")
fstamp(15)
def kwrite(chunk, stg):
    ad = vKW + chunk
    a(f"ds_write_b128 v{ad}, {v(stg,4)}\nds_write_b128 v{ad}, {v(stg+4,4)} offset:4096")
def kread(dst):
    for k in range(8):
        a(f"ds_read_b64_tr_b16 {v(dst+4*k,2)}, v{vKR} offset:{1024*k}")
        a(f"ds_read_b64_tr_b16 {v(dst+4*k+2,2)}, v{vKR2} offset:{1024*k+256}")
extra = [[(E2, E1, E1, False)], [(E4, E2, E2, False)], [(PX[1], PX[0], E1, False)], [(PX[2], PX[0], E2, False)], [(PX[3], PX[1], E2, False)],
         [(PX[4], PX[0], E4, False)], [(PX[5], PX[1], E4, False)], [(PX[6], PX[2], E4, False)], [(PX[7], PX[3], E4, False)],
         [(PX[8], PX[0], WC, True)]]
for i in range(16):
    st = STG[(i//4) % 2]
    a(f"v_cvt_pk_bf16_f32 v{st+i%4}, v{BE}, v{BO}\nv_cvt_pk_bf16_f32 v{st+4+i%4}, v{BE+1}, v{BO+1}")
    if i == 0:
        a(f"v_mov_b64 {v(BE,2)}, {v(W2,2)}")
        grp = [(BO, BO, W2, False)] + extra[i]
    else:
        grp = [(BE, BE, W2, False)] + ([(BO, BO, W2, False)] if i < 15 else []) + (extra[i] if i < len(extra) else [])
    cmuls(grp, TT)
    if i % 4 == 3: kwrite(i//4, st)
fstamp(13)
kread(BFR)
Q = BE
def apack(st, rows):
    for i in range(4):
        x, y = rows[2*i], rows[2*i+1]
        a(f"v_cvt_pk_bf16_f32 v{st+i}, v{x}, v{y}\nv_cvt_pk_bf16_f32 v{st+4+i}, v{x+1}, v{y+1}")
apack(STG[0], [PX[i] for i in range(8)])
cmuls([(PX[x], PX[x], Q, True) for x in (0, 2, 4, 6, 8)], TT)
kwrite(0, STG[0])
apack(STG[1], [PX[x] for x in (0, 0, 2, 4, 4, 4, 6, 8)])
cmuls([(PX[x], PX[x], Q, True) for x in (0, 4, 8)], TT)
kwrite(1, STG[1])
cmuls([(PX[y], PX[x], Q, True) for x, y in ((0, 1), (4, 5), (8, 7))], TT)
apack(STG[0], [PX[0], PX[4], PX[8], PX[8], PX[1], PX[5], PX[7], PX[7]])
cmuls([(PX[0], PX[1], Q, True), (PX[8], PX[7], Q, True)], TT)
kwrite(2, STG[0])
cmuls([(PX[1], PX[0], Q, True), (PX[7], PX[8], Q, True)], TT)
cmuls([(PX[2], PX[1], Q, True), (PX[3], PX[7], Q, True)], TT)
cmuls([(PX[4], PX[2], Q, True), (PX[5], PX[3], Q, True)], TT)
apack(STG[1], [PX[0], PX[8], PX[1], PX[7], PX[2], PX[3], PX[4], PX[5]])
kwrite(3, STG[1])
fstamp(14)
kread(AFR)
for k in range(8):
    a(f"s_waitcnt lgkmcnt({min(15, 14-2*k)})")
    a(f"v_mfma_f32_32x32x16_bf16 {v(DACC,16)}, {v(AFR+4*k,4)}, {v(BFR+4*k,4)}, {v(DACC,16) if k else 0}")
for q in range(4):
    a(f"ds_write_b128 v{vPW}, {v(DACC+4*q,4)} offset:{1024*q}")
stamp(2)
a(f"s_cmp_eq_u32 s{sROLE}, 0\ns_cbranch_scc0 L_S1")
PD = 128
if PR_MM: prio(PR_MM)
a("s_waitcnt lgkmcnt(0)")

def g1_reads(st, kap):
    return [f"ds_read_b64_tr_b16 {v(st+8,2)}, v{vWA} offset:{kap*2048}",
            f"ds_read_b64_tr_b16 {v(st+10,2)}, v{vWA} offset:{kap*2048 + 512}",
            f"ds_read_b128 {v(st,4)}, v{vXA+kap}",
            f"ds_read_b128 {v(st+4,4)}, v{vXA+kap} offset:4096",
            f"ds_read_b64_tr_b16 {v(st+12,2)}, v{vWA} offset:{kap*2048 + 8192}",
            f"ds_read_b64_tr_b16 {v(st+14,2)}, v{vWA} offset:{kap*2048 + 8192 + 512}"]
def g1_mfma(st):
    return [f"v_mfma_f32_32x32x16_bf16 {v(ACC+ao,16)}, {v(st+wo,4)}, {v(st+xo,4)}, {v(ACC+ao,16)}"
            for (wo, xo, ao) in ((8, 0, 0), (8, 4, 16), (12, 0, 32), (12, 4, 48))]
ONEW = opt("onew", 0)
p0 = a.pos()
a("L_g1:")
if PROF and FINE: a(f"s_memtime s[92:93]\ns_sub_u32 m0, 39, s{sIT}\ns_waitcnt lgkmcnt(0)\nv_writelane_b32 v{VP}, s92, m0")
a("s_barrier")
if PROF and FINE: a(f"s_memtime s[92:93]\ns_sub_u32 m0, 23, s{sIT}\ns_waitcnt lgkmcnt(0)\nv_writelane_b32 v{VP}, s92, m0")
a("L_g1_body:")
for kap in range(4):
    st_r = F0 if kap % 2 == 0 else F1
    st_m = F1 if kap % 2 == 0 else F0
    rd = g1_reads(st_r, kap); mf = g1_mfma(st_m)
    cw = kap > 0 and not ONEW
    if kap > 0: a(f"s_waitcnt lgkmcnt({0 if ONEW else 3})")
    a(mf[0]); a(rd[0]); a(rd[1]); a(rd[2])
    if cw: a("s_waitcnt lgkmcnt(5)")
    a(mf[1]); a(rd[3]); a(rd[4]); a(rd[5])
    if cw: a("s_waitcnt lgkmcnt(6)")
    a(mf[2])
    a(f"v_add_u32 v{vXA+kap}, {UNIT}, v{vXA+kap}")
    if kap == 0: a(f"s_lshr_b32 s{sUT}, s{sUT}, 4\ns_and_b32 s{sT0}, s{sUT}, 15\ns_lshl_b32 s{sT0}, s{sT0}, 14")
    if kap == 3: a(f"v_add_u32 v{vWA}, s{sT0}, v{vWA0}\ns_sub_u32 s{sIT}, s{sIT}, 1\ns_cmp_lg_u32 s{sIT}, 0")
    a(mf[3])
a(f"s_waitcnt vmcnt(0) lgkmcnt(0)\ns_cbranch_scc1 L_g1")
a.check_backedge(p0, a.pos())
a(f"s_cmp_eq_u32 s{sROLE}, 0\ns_cbranch_scc0 L_S2")

ET = 192
def epilogue():
    out = []
    gi = 0
    for nb in range(2):
        for jf in range(2):
            G = ACC + 16*nb + 8*jf; U = G + 32
            pk = ET + 4*gi
            for half in range(2):
                e = [4*half + i for i in range(4)]
                t = [18 + 4*half + i for i in range(4)]
                out += [f"v_mul_f32 v{t[i]}, s{sNL2E}, v{G+e[i]}" for i in range(4)]
                out += [f"v_exp_f32 v{t[i]}, v{t[i]}" for i in range(4)]
                out += [f"v_add_f32 v{t[i]}, 1.0, v{t[i]}" for i in range(4)]
                out += [f"v_rcp_f32 v{t[i]}, v{t[i]}" for i in range(4)]
                out += [f"v_mul_f32 v{t[i]}, v{t[i]}, v{U+e[i]}" for i in range(4)]
                out += [f"v_cvt_pk_bf16_f32 v{pk+2*half+i}, v{t[2*i]}, v{t[2*i+1]}" for i in range(2)]
            out.append(f"buffer_store_dwordx4 {v(pk,4)}, v{vL16}, {s(R_WS,4)}, s{sHS} offen offset:{jf*2048 + nb*1024} sc1")
            gi += 1
    return out
def drain_mfma():
    mf = g1_mfma(F1)
    return [mf[0], mf[2], mf[1], mf[3]]

vZ, vNV, vONE, vCN, vPR, vTMP = 16, 17, 26, 27, 28, 29
PKD, UDAT = 160, 172
vZ4, vPADA, vXCA, vUWA, vKWA, vKWB, vUP, vUO, vUF = 180, 184, 185, 186, 187, 188, 189, 190, 191
a("s_barrier")
stamp(3)
queue = []
def issue(txt, tag):
    a(txt); queue.append(tag)
def wait_tags(pred, extra=""):
    idx = max([i for i, t in enumerate(queue) if pred(t)], default=-1)
    del queue[:idx+1]
    if idx >= 0 or extra: a(f"s_waitcnt vmcnt({min(63, len(queue))}){extra}")
def wait_for(tag): wait_tags(lambda t: t == tag)
def mix(valu, dmas):
    n = len(dmas); per = len(valu) / (n + 0.5) if n else 0
    k = 0
    for i, x in enumerate(valu):
        while k < n and i >= k*per: issue(*dmas[k]); k += 1
        if x.startswith("buffer_store"): issue(x, "S")
        else: a(x)
    while k < n: issue(*dmas[k]); k += 1
def tagged(lst, tag): return [(x, tag) for x in lst]
def p_bar(g):
    fstamp(48 + g)
    wait_tags(lambda t: t == ("w", g), " lgkmcnt(0)")
    fstamp(32 + g)
    a("s_barrier")
    fstamp(16 + g)
reduce_k = []
for e in range(8): reduce_k += [f"v_add_f32 v{PD+e}, v{PD+e}, v{PD+8+e}", f"v_add_f32 v{PD+16+e}, v{PD+16+e}, v{PD+24+e}"]
for e in range(8): reduce_k.append(f"v_add_f32 v{PD+e}, v{PD+e}, v{PD+16+e}")
c = lambda d, x, y: f"v_cvt_pk_bf16_f32 v{PKD+d}, v{PD+x}, v{PD+y}"
pack_k = f"""s_bitcmp1_b32 s{sW}, 0
s_cbranch_scc1 L_pack_hi
s_mov_b64 exec, 1
v_add_f32 v{PD}, v{vDSK}, v{PD}
s_mov_b64 exec, -1
{c(0,0,1)}
{c(1,2,3)}
{c(2,4,5)}
{c(3,6,7)}
s_branch L_pack_done
L_pack_hi:
""" + "\n".join(c(d, x, y) for d, (x, y) in enumerate([(0,0),(0,1),(1,1),(2,2),(4,4),(4,4),(4,5),(5,5),(6,6),(6,6),(6,7),(7,7)])) + f"""
s_mov_b32 exec_lo, 0xaaaaaaaa
s_mov_b32 exec_hi, 0xaaaaaaaa
v_mov_b32 v{PKD+6}, v{PKD+7}
v_mov_b32 v{PKD+10}, v{PKD+11}
s_mov_b64 exec, -1
L_pack_done:"""
addr1 = f"""v_mov_b64 {v(vZ4,2)}, 0
v_mov_b64 {v(vZ4+2,2)}, 0
v_lshrrev_b32 v32, 3, v0
v_and_b32 v33, 7, v0
v_mul_u32_u24 v{vPADA}, {RS}, v32
v_lshl_add_u32 v{vPADA}, v33, 4, v{vPADA}
v_add_u32 v{vPADA}, {UB}, v{vPADA}
v_lshrrev_b32 v34, 5, v0
v_mul_u32_u24 v35, {KS}, v34
v_and_b32 v32, 3, v32
v_lshl_add_u32 v35, v32, 4, v35
s_mov_b32 exec_lo, 0x80808080|s_mov_b32 exec_hi, 0x80808080|v_add_u32 v{vPADA}, {KB}, v35|s_mov_b64 exec, -1
s_lshl_b32 s{sT0}, s{sW4}, 9|s_add_u32 s{sT0}, s{sT0}, {XCH}|v_lshl_add_u32 v{vXCA}, v0, 3, s{sT0}
v_mov_b32 v{vCN}, {CNT}
v_mov_b32 v{vONE}, 1
v_and_b32 v32, 31, v0
s_mul_i32 s{sT0}, s{sCH}, {KS}|s_add_u32 s{sT0}, s{sT0}, {KB + 64}|v_lshl_add_u32 v32, v32, 4, s{sT0}
s_bitcmp1_b32 s{sW}, 0|s_cselect_b32 s{sT1}, 9, 3|v_lshl_add_u32 v{vKWA}, v34, s{sT1}, v32
v_lshl_add_u32 v{vKWB}, v34, 10, v32""".replace("|", "\\n").split("\n")
addr2 = f"""v_and_b32 v{vUP}, 31, v0
v_lshlrev_b32 v{vUP}, 8, v{vUP}
v_add_u32 v{vUP}, {WS_FLAGU}, v{vUP}
v_bfe_u32 v32, v0, 3, 1
s_lshl_b32 s{sT0}, s{sPAIR}, 1|v_add_u32 v33, s{sT0}, v32
v_xor_b32 v33, v33, v0
v_bfe_u32 v34, v33, 1, 2
v_lshl_add_u32 v32, v32, 2, v34
v_mul_u32_u24 v32, {RS}, v32
v_and_b32 v33, 1, v33
v_lshl_add_u32 v32, v33, 4, v32
v_lshrrev_b32 v33, 4, v0
v_lshl_add_u32 v32, v33, 5, v32
s_lshl_b32 s{sT0}, s{sW4}, 8|s_add_u32 s{sT0}, s{sT0}, {UB + 112}|v_add_u32 v{vUWA}, s{sT0}, v32
v_mul_u32_u24 v{vUO}, 57344, v33
v_and_b32 v32, 15, v0
v_lshl_add_u32 v{vUO}, v32, 4, v{vUO}""".replace("|", "\\n").split("\n")
addr3 = f"""v_add_u32 v{vWB}, s{sWK4}, v{vWB}
v_xor_b32 v{vWB+1}, 64, v{vWB}
v_add_u32 v{vWB+2}, 0x10000, v{vWB}
v_add_u32 v{vWB+3}, 0x10000, v{vWB+1}
v_add_u32 v{vWB+4}, 0x20000, v{vWB}
v_add_u32 v{vWB+5}, 0x20000, v{vWB+1}
s_lshl2_add_u32 s{sHL}, s{sX}, s{sJQ}|s_mul_i32 s{sHL}, s{sHL}, 14|s_lshr_b32 s{sT0}, s{sW4}, 1|s_mul_i32 s{sT0}, s{sT0}, 7|s_add_u32 s{sHL}, s{sHL}, s{sT0}
s_and_b32 s{sT0}, s{sW4}, 1|s_lshl2_add_u32 s{sHL}, s{sHL}, s{sT0}
v_min_u32 v{vPOL}, 6, v0
s_lshl_b32 s{sT0}, s{sHL}, 8|s_add_u32 s{sT0}, s{sT0}, {WS_FLAGH}|v_lshl_add_u32 v{vPOL}, v{vPOL}, 10, s{sT0}
s_lshl_b32 s{sHL}, s{sHL}, 12|s_add_u32 s{sHL}, s{sHL}, {WS_H}""".replace("|", "\\n").split("\n")
fix = lambda L: [x.replace("\\n", "\n") for x in L]
addr1, addr2, addr3 = fix(addr1), fix(addr2), fix(addr3)
epi = epilogue()
EB = [0, opt("e7", 45), opt("e8", 90), opt("e9", 135), 180]
def pb(g): return [x for kind, n in PB_DMA[g] for x in tagged(dma_w_list(n) if kind == "w" else dma_wd_list(n), (kind, n))]
dm = drain_mfma(); w9 = tagged(dma_w_list(9), ("w", 9))
a(f"v_mov_b32 v{vZ}, 0")
for i in range(4): a(dm[i])
if PR_MM != PR_LD: prio(PR_LD)
for i in range(4): issue(*w9[i])
issue(f"global_load_dword v{vNV}, v{vZ}, {s(P_DBG,2)} sc1", "non")
mix(epi[:EB[1]], [])
for g in (8, 9, 10):
    p_bar(g)
    mix(epi[EB[g-7]:EB[g-6]], pb(g))
def flagA():
    wait_for("S")
    nonce_check(vNV, vZ)
    issue(f"buffer_store_dword v{vNV}, v{vFLG}, {s(R_WS,4)}, s{sFS} offen sc1", "flag")
p_bar(11)
FA = opt("fa", 2)
emit(addr2[:3])
issue(f"buffer_load_dword v{vUF}, v{vUP}, {s(R_WS,4)}, 0 offen sc1", "upoll")
if FA == 0: flagA()
mix(addr3 + [f"v_mov_b64 {v(vZ4,2)}, 0", f"v_mov_b64 {v(vZ4+2,2)}, 0", f"v_mov_b32 v{vCN}, {CNT}", f"v_mov_b32 v{vONE}, 1",
     f"s_lshl_b32 s{sT0}, s{sW4}, 9\ns_add_u32 s{sT0}, s{sT0}, {XCH}\nv_lshl_add_u32 v{vXCA}, v0, 3, s{sT0}"], pb(11))
if FA == 1: flagA()
p_bar(12)
if FA == 2: flagA()
a(f"ds_write_b64 v{vXCA}, {v(vZ4,2)}\ns_mov_b64 exec, 1\nds_write_b128 v{vCN}, {v(vZ4,4)}\ns_mov_b64 exec, -1")
mix([], pb(12))
p_bar(13)
stamp(4)
if PR_G2 != PR_LD: prio(PR_G2)
wait_for("upoll")
check_or_poll(vUF, vUP, 0)
a(f"s_mov_b64 exec, 1\nds_add_u32 v{vCN}, v{vONE} offset:4\ns_mov_b64 exec, -1")
PA = opt("pa", 1)
pollA = (f"buffer_load_dword v{vPR}, v{vPOL}, {s(R_WS,4)}, 0 offen sc1", "pollA")
for n in (4, 5, 6, 7):
    if n - 4 == PA: issue(*pollA)
    if n == 6: lds_cnt_wait(vTMP, vCN, 0, 4)
    for x in dma_wd_list(n): issue(x, ("wd", n))
stamp(5)
wait_for("pollA")
check_or_poll(vPR, vPOL, 0)
stamp(6)
HSC = " sc1"
HF = [64 + 16*i for i in range(4)] + [208 + 16*i for i in range(3)]
def h_list(n):
    p, i7 = divmod(n, 7)
    out = []
    for i in range(4):
        pre = pi(sT1, i7) + f"\ns_lshl_b32 s{sT1}, s{sT1}, 14\ns_add_u32 s{sT1}, s{sT1}, s{sHL}\n" if i == 0 else ""
        out.append((pre + f"buffer_load_dwordx4 {v(HF[i7]+4*i,4)}, v{vL16}, {s(R_WS,4)}, s{sT1} offen offset:{1024*i}{HSC}", ("h", n, i//2)))
    return out
AC2 = 128
def g2_reads(st, n, ks):
    u = UNIT_OF[n]; hi = u // 4; off = (u % 4)*UNIT + ks*2048
    return [f"ds_read_b64_tr_b16 {v(st+4*mb+2*sec,2)}, v{vWB+2*hi+mb} offset:{off + sec*1024}" for mb in range(2) for sec in range(2)]
for i in range(3):
    for x in h_list(i): issue(*x)
def checkB():
    stamp(7)
    wait_for("pollB")
    check_or_poll(vPR, vPOL, 512)
    a(f"s_add_u32 s{sHL}, s{sHL}, 8192")
    stamp(8)
pollB = (f"buffer_load_dword v{vPR}, v{vPOL}, {s(R_WS,4)}, 0 offen offset:512 sc1", "pollB")
plan = [("h", 3), ("h", 4), ("h", 5), ("h", 6), ("w", 8), ("w", 9), ("w", 10), ("w", 11), None, ("w", 12), ("h", 7), ("h", 8), ("h", 9), ("w", 13),
        ("h", 10), None, ("h", 11), None, ("h", 12), None, ("h", 13)]
if opt("plan", 0) == 1:
    plan = [("h", 3), ("h", 4), ("h", 5), ("h", 6), ("w", 8), ("w", 9), ("w", 10), ("w", 11), ("h", 7), ("h", 8), ("w", 12), ("h", 9), ("w", 13), None,
            ("h", 10), None, ("h", 11), None, ("h", 12), None, ("h", 13)]
sched = {i: (h_list(x[1]) if x[0] == "h" else tagged(dma_wd_list(x[1]), ("wd", x[1]))) for i, x in enumerate(plan) if x}
sched[plan.index(("h", 7)) - opt("pollb", 4)].insert(0, pollB)
steps = [(n, ks) for n in range(14) for ks in range(2)]
wait_for(("wd", 0))
for x in g2_reads(F0, *steps[0]): a(x)
for si, (n, ks) in enumerate(steps):
    st = F0 + 8*(si % 2); st2 = F0 + 8*((si+1) % 2)
    nxt = []
    if si < len(plan) and plan[si] == ("h", 7): checkB()
    if si + 1 < len(steps):
        wait_for(("wd", steps[si+1][0]))
        nxt = g2_reads(st2, *steps[si+1])
    if G2S and si < 24: stamp(40 + si)
    wait_for(("h", n, ks))
    a("s_waitcnt lgkmcnt(0)")
    if G2S and si < 24: stamp(16 + si)
    items = list(sched.get(si, []))
    if si < len(plan) and plan[si]:
        kind, m = plan[si]
        if kind == "w" and m >= 8: assert si >= 2*(m-8) + 1
        if kind == "h" and m >= 7: assert si >= 2*(m-7) + 2
    k = 0
    for mb in range(2):
        for nb in range(2):
            acc = AC2 + 32*mb + 16*nb
            a(f"v_mfma_f32_32x32x16_bf16 {v(acc,16)}, {v(st+4*mb,4)}, {v(HF[n%7]+8*ks+4*nb,4)}, {0 if si == 0 else v(acc,16)}")
            if k < 2 and nxt: a(nxt[2*k]); a(nxt[2*k+1])
            for _ in range((len(items) + 3 - k) // (4 - k)): issue(*items.pop(0))
            if si == len(plan) - 1 - opt("asig", 0) and k == 3: a(f"s_mov_b64 exec, 1\nds_add_u32 v{vCN}, v{vONE} offset:8\ns_mov_b64 exec, -1")
            if si == 26 and k == 2:
                a(f"""v_and_b32 v18, 15, v0
v_lshlrev_b32 v18, 8, v18
v_bfe_u32 v19, v0, 4, 1
v_lshl_add_u32 v18, v19, 14, v18
s_add_u32 s{sT0}, s{sWK4}, {5*UNIT}
v_add_u32 v18, s{sT0}, v18""")
            if si == 26 and k == 3:
                a(f"""v_lshrrev_b32 v19, 5, v0
v_and_b32 v20, 7, v0
v_xor_b32 v19, v19, v20
v_lshl_add_u32 v18, v19, 4, v18""")
            if si == 27 and k == 0:
                a("v_xor_b32 v19, 32, v18\nv_xor_b32 v20, 64, v18\nv_xor_b32 v21, 96, v18")
            k += 1
stamp(9)
for mb in range(2):
    for nb in range(2):
        for vq in range(4):
            a(f"ds_write_b128 v{18+vq}, {v(AC2+32*mb+16*nb+4*vq,4)} offset:{mb*128 + nb*32768}")
a("s_branch L_final")

a("L_S1:")
if PR_KS != PR_LD: prio(PR_LD)
queue[:] = [("w", 0)]*8 + ["t"]*(NB1-8)
for g in (1, 2):
    for x in dma_x_list(g) + dma_w_list(g): issue(x, ("w", g))
if TOUCH_WB: issue(f"global_load_dword v46, v{vTW}, {s(sTB,2)} offset:128", "t")
vUA, vKA, vXCA, vCNA = 14, 15, 9, 27
def s_addr():
    a(f"""v_and_b32 v20, 3, v0
v_mul_u32_u24 v21, {RS}, v20
v_bfe_u32 v22, v0, 2, 3
v_lshrrev_b32 v23, 5, v0
v_add_u32 v22, v22, v23
v_lshl_add_u32 v21, v22, 4, v21
s_mul_i32 s{sT0}, s{sCH}, {4*RS}
s_add_u32 s{sT0}, s{sT0}, {UB}
v_add_u32 v{vUA}, s{sT0}, v21
v_bfe_u32 v21, v0, 4, 1
v_lshl_add_u32 v21, v21, 2, v20
v_bfe_u32 v22, v0, 2, 2
v_lshl_add_u32 v22, v23, 3, v22
v_sub_u32 v21, v21, v22
s_mul_i32 s{sT0}, s{sCH}, {KS}
s_add_u32 s{sT0}, s{sT0}, {KB + 96}
v_lshl_add_u32 v{vKA}, v21, 3, s{sT0}
s_lshl_b32 s{sT0}, s{sW4}, 9
s_add_u32 s{sT0}, s{sT0}, {XCH}
v_lshl_add_u32 v{vXCA}, v0, 3, s{sT0}
v_mov_b32 v{vCNA}, {CNT}
v_mov_b32 v{vONE}, 1
v_lshlrev_b32 v20, 6, v20
v_lshrrev_b32 v21, 2, v0
v_add_lshl_u32 v8, v20, v21, 2
""")
a(f"""s_lshl_b32 s{sT0}, s{sCH}, 14
s_and_b32 s{sT1}, s{sW}, 1
s_lshl_b32 s{sT1}, s{sT1}, 11
s_add_u32 s{sT0}, s{sT0}, s{sT1}
s_add_u32 s{sT0}, s{sT0}, {SCR}
v_add_u32 v14, s{sT0}, v{vL16}
""")
addr1 = [x for x in addr1 if f"v{vCN}," not in x and f"v{vONE}," not in x and "v185" not in x]
for g in range(0, 7):
    fstamp(48 + 7 + g)
    wait_tags(lambda t: t == ("w", g), " lgkmcnt(0)")
    fstamp(32 + 7 + g)
    a("s_barrier")
    fstamp(16 + 7 + g)
    if g == 0:
        for i, wo in enumerate([0, 8192, 32768, 40960]):
            for q in range(2):
                a(f"ds_read_b128 {v(PD+8*i+4*q,4)}, v14 offset:{wo + 1024*q}")
        g1_setup(1); a(f"v_mov_b32 v{vZ}, 0")
    else:
        work = {1: [], 2: addr2[3:], 3: addr1, 4: [], 5: reduce_k + [pack_k], 6: []}[g]
        mix(work, tagged((dma_x_list(g + 2) if g + 2 <= 6 else []) + dma_w_list(g + 2), ("w", g + 2)))
    if g == 6:
        issue(f"global_load_dword v{vNV}, v{vZ}, {s(P_DBG,2)} sc1", "non"); s_addr()
wait_for(("w", 7))
stamp(3)
if PR_MM != PR_LD: prio(PR_MM)
S_PENDING = len(queue)
a("s_branch L_g1")
a("L_S2:")
dm = drain_mfma()
a(dm[0]); a(f"s_mov_b64 exec, 1\nds_add_u32 v{vCNA}, v{vONE}\ns_mov_b64 exec, -1"); a(dm[1]); a(dm[2]); a(dm[3])
if PR_EB != PR_MM: prio(PR_EB)
a(f"""s_mul_i32 s{sT3}, s{sW4}, {8*57344}
s_lshl_b32 s{sT1}, s{sPAIR}, 8
s_add_u32 s{sT3}, s{sT3}, s{sT1}
s_add_u32 s{sT3}, s{sT3}, {WS_UT}
s_add_u32 s{sT1}, s{sT3}, {4*57344}
s_lshl4_add_u32 s{sT2_}, s{sX}, s{sJQ}
s_lshl_b32 s{sT2_}, s{sT2_}, 6
s_add_u32 s{sT2_}, s{sT2_}, {WS_G}
""")
nonce_check(vNV, vZ)
stamp(9)
epi = epilogue()
UL = opt("ul", 0)
for x in epi[:UL]: a(x)
lds_cnt_wait(vTMP, vCNA, 4, 1)
a(f"""buffer_load_dwordx4 {v(UDAT,4)}, v{vUO}, {s(R_WS,4)}, s{sT3} offen sc1
buffer_load_dwordx4 {v(UDAT+4,4)}, v{vUO}, {s(R_WS,4)}, s{sT1} offen sc1
buffer_load_dword v54, v8, {s(R_WS,4)}, s{sT2_} offen sc1
""")
for x in epi[UL:]: a(x)
nst = sum(x.startswith("buffer_store") for x in epi[UL:])
stamp(13 if not FINE else 63)
a(f"""ds_write_b128 v{vPADA}, {v(vZ4,4)}
s_bitcmp1_b32 s{sW}, 0
s_cbranch_scc1 L_kw_hi
ds_write_b64 v{vKWA}, {v(PKD,2)}
ds_write_b64 v{vKWA}, {v(PKD+2,2)} offset:512
s_branch L_kw_done
L_kw_hi:
ds_write_b128 v{vKWA}, {v(PKD,4)} offset:1024
ds_write_b128 v{vKWB}, {v(PKD+4,4)} offset:2048
ds_write_b128 v{vKWB}, {v(PKD+8,4)} offset:2560
L_kw_done:
v_add_u32 v55, {GL}, v{vFLG}
v_mov_b64 v[40:41], 0
s_waitcnt vmcnt({nst})
ds_write_b128 v{vUWA}, {v(UDAT,4)}
ds_write_b128 v{vUWA}, {v(UDAT+4,4)} offset:128
ds_write_b32 v55, v54
s_mov_b64 exec, 1\nds_add_u32 v{vCNA}, v{vONE} offset:12\ns_mov_b64 exec, -1
""")
lds_cnt_wait(vTMP, vCNA, 12, 4)
if DUMPK:
    a(f"""s_mul_i32 s{sT0}, s{sCH}, {KS}
s_and_b32 s{sT1}, s{sW}, 1
s_lshl_b32 s{sT1}, s{sT1}, 11
s_add_u32 s{sT0}, s{sT0}, s{sT1}
s_add_u32 s{sT0}, s{sT0}, {KB + 64}
v_lshl_add_u32 v60, v0, 4, s{sT0}
ds_read_b128 v[56:59], v60
ds_read_b128 v[48:51], v60 offset:1024
s_lshl_b32 s{sT0}, s{sPAIR}, 1
s_add_u32 s{sT0}, s{sT0}, s{sCH}
s_lshl_b32 s{sT0}, s{sT0}, 12
s_add_u32 s{sT0}, s{sT0}, s{sT1}
s_add_u32 s{sT0}, s{sT0}, {WS_DBG}
s_waitcnt lgkmcnt(0)
buffer_store_dwordx4 v[56:59], v{vL16}, {s(R_WS,4)}, s{sT0} offen
buffer_store_dwordx4 v[48:51], v{vL16}, {s(R_WS,4)}, s{sT0} offen offset:1024
s_waitcnt vmcnt(0)
""")
if PR_CV != PR_EB: prio(PR_CV)
stamp(7)
a(f"s_bitcmp1_b32 s{sW}, 0\ns_cbranch_scc1 L_conv1")
CA = 64; US = [128, 160]; KSr = [192, 224]
def conv(blocks):
    bmax = max(blocks)
    pairs = sorted([(b - t, t, bi) for bi, b in enumerate(blocks) for t in range(b + 1)], key=lambda x: (max(x[0], x[1]), x[2]))
    def reads(rp):
        out = []
        for i in range(bmax + 1):
            out.append(f"ds_read_b128 {v(US[rp%2]+4*i,4)}, v{vUA} offset:{128*i - 32*rp + 96}")
            t = rp + 4*i
            out.append(f"ds_read_b64_tr_b16 {v(KSr[rp%2]+4*i,2)}, v{vKA} offset:{32 + 128*t}")
            out.append(f"ds_read_b64_tr_b16 {v(KSr[rp%2]+4*i+2,2)}, v{vKA} offset:{128*t}")
        return out
    for x in reads(0): a(x)
    seen = set()
    for rp in range(4):
        nxt = reads(rp + 1) if rp < 3 else []
        a("s_waitcnt lgkmcnt(0)")
        fb = f"s_setprio 3\ns_waitcnt vmcnt(0)\nbuffer_store_dword v{vNV}, v{vFLG}, {s(R_WS,4)}, s{sFS} offen sc1\ns_setprio {PR_CV}"
        pl = pairs if rp < 3 else sorted(pairs, key=lambda x: x[2])
        for mi, (sg, t, bi) in enumerate(pl):
            if 18*rp + mi == opt("fbm", 9): a(fb)
            acc = CA + 16*bi
            a(f"v_mfma_f32_32x32x16_bf16 {v(acc,16)}, {v(US[rp%2]+4*sg,4)}, {v(KSr[rp%2]+4*t,4)}, {v(acc,16) if bi in seen else 0}")
            seen.add(bi)
            for _ in range(2):
                if nxt: a(nxt.pop(0))
        assert not nxt
    stamp(4)
    prio(opt("prrd", 2))
    runs = []
    for bi, b in enumerate(blocks):
        if runs and blocks[runs[-1][-1]] == b - 1: runs[-1].append(bi)
        else: runs.append([bi])
    OV = [40, 41]
    outr = [r for r in runs if blocks[r[-1]] < 7]
    inr = [r for r in runs if blocks[r[0]] > 0]
    for r in (3, 2, 1):
        a("s_mov_b32 exec_lo, 0\ns_mov_b32 exec_hi, 0x80000000")
        for run in runs:
            regs = [CA + 16*bi + 4*q + r for bi in run for q in range(4)]
            if run in outr: a(f"v_mov_b32 v{OV[outr.index(run)]}, v{regs[-1]}")
            for i in range(len(regs) - 1, 0, -1): a(f"v_mov_b32 v{regs[i]}, v{regs[i-1]}")
            a(f"v_mov_b32 v{regs[0]}, 0")
        a("s_mov_b64 exec, -1")
        for o in OV: a(f"v_mov_b32_dpp v{o}, v{o} wave_ror:1 row_mask:0xf bank_mask:0xf")
        if r == 1:
            a(f"""s_mov_b32 exec_lo, 0
s_mov_b32 exec_hi, 0x80000000
v_mov_b32 v40, 1.0
v_mov_b32 v41, 1.0
s_mov_b64 exec, -1
ds_write_b64 v{vXCA}, v[40:41]
v_xor_b32 v42, 512, v{vXCA}
""")
        for bi in range(4):
            for q in range(4):
                x = CA + 16*bi + 4*q + r
                a(f"v_add_f32_dpp v{x-1}, v{x}, v{x-1} wave_ror:1 row_mask:0xf bank_mask:0xf")
    a(f"""s_lshl1_add_u32 s{sT1}, s{sPAIR}, s{sCH}
s_lshl_b32 s{sT1}, s{sT1}, 10
""")
    def pub(bi):
        x = CA + 16*bi; b = blocks[bi]
        a(f"""v_cvt_pk_bf16_f32 v{x}, v{x}, v{x+4}
v_mov_b32 v{x+1}, v{vNV}
v_cvt_pk_bf16_f32 v{x+2}, v{x+8}, v{x+12}
v_mov_b32 v{x+3}, v{vNV}
s_add_u32 s{sT3}, s{sT1}, {WS_AT + b*448*1024}
buffer_store_dwordx4 {v(x,4)}, v{vL16}, {s(R_WS,4)}, s{sT3} offen sc1""")
    need = [inr[0][0], inr[1][0]]
    for bi in range(4):
        if bi not in need: pub(bi)
    spin(f"ds_read_b64 v[40:41], v42\ns_waitcnt lgkmcnt(0)\nv_readlane_b32 s{sT0}, v40, 63\ns_cmp_lg_u32 s{sT0}, 0", "s_cbranch_scc1", SPIN*8)
    a(f"""s_mov_b64 exec, 7
v_add_f32 v{CA+16*need[0]}, v40, v{CA+16*need[0]}
v_add_f32 v{CA+16*need[1]}, v41, v{CA+16*need[1]}
s_mov_b64 exec, -1
""")
    for bi in need: pub(bi)
conv([0, 3, 4, 7])
a("s_branch L_convdone\nL_conv1:")
conv([1, 2, 5, 6])
a("L_convdone:")
stamp(5)
a(f"""; a tile: d = 64db + 16w + 4i + (lane>>4); 16 B granule (lane&15) of quarter jq
v_lshrrev_b32 v47, 4, v0
v_and_b32 v48, 15, v0
v_lshlrev_b32 v49, 10, v47
v_lshl_add_u32 v49, v48, 4, v49
s_mul_i32 s{sT0}, s{sX}, 28
s_lshl2_add_u32 s{sT0}, s{sJR}, s{sT0}
s_add_u32 s{sT0}, s{sT0}, s{sW4}
s_lshl_b32 s{sT0}, s{sT0}, 6
s_add_u32 s{sT0}, s{sT0}, s{sJQ}
s_lshl_b32 s{sT0}, s{sT0}, 8
s_add_u32 s{sT0}, s{sT0}, {WS_AT}
s_add_u32 s{sT1}, s{sT0}, 4096
s_add_u32 s{sT2_}, s{sT0}, 8192
s_add_u32 s{sT3}, s{sT0}, 12288
v_lshrrev_b32 v50, 1, v48
s_lshl_b32 s{sIT}, s{sW4}, 1
v_xor_b32 v50, s{sIT}, v50
v_lshlrev_b32 v50, 4, v50
v_lshl_add_u32 v50, v48, 9, v50
v_lshl_add_u32 v50, v47, 1, v50
v_add_u32 v50, {ATL}, v50
v_xor_b32 v51, 16, v50
s_mov_b32 s{sRG}, s{sT0}
""")
prio(0)
lds_cnt_wait(56, vCNA, 8, opt("asign", 4))
prio(2)
stamp(6)
body = ""
for i, so in enumerate([sRG, sT1, sT2_, sT3]):
    body += f"buffer_load_dwordx4 {v(128+4*i,4)}, v49, {s(R_WS,4)}, s{so} offen sc1\n"
body += "s_waitcnt vmcnt(0)\n"
for i in range(8): body += f"v_xor_b32 v{144+i}, s{sNON}, v{129+2*i}\n"
body += "v_or3_b32 v144, v144, v145, v146\nv_or3_b32 v147, v147, v148, v149\nv_or3_b32 v144, v144, v150, v151\nv_or_b32 v144, v144, v147\nv_cmp_ne_u32 vcc, 0, v144"
spin(body, "s_cbranch_vccz")
stamp(8)
for i in range(4):
    for q in range(4):
        a(f"ds_write_b16{'_d16_hi' if q % 2 else ''} v{50+i//2}, v{128+4*i+2*(q//2)} offset:{128*q + 8*(i%2)}")

a(f"""L_final:
v_lshrrev_b32 v17, 3, v0
v_and_b32 v16, 7, v0
s_lshr_b32 s{sT0}, s{sW}, 1
s_and_b32 s{sT1}, s{sW}, 1
s_lshl3_add_u32 s{sT0}, s{sT0}, s{sT1}
s_lshl_b32 s{sT0}, s{sT0}, 11
s_add_u32 s{sT0}, s{sT0}, {5*UNIT}
v_lshlrev_b32 v22, 1, v16
v_xor_b32 v22, v22, v17
v_lshl_add_u32 v22, v22, 4, s{sT0}
v_lshl_add_u32 v22, v17, 8, v22
v_xor_b32 v23, 16, v22
v_xor_b32 v24, s{sW}, v16
s_lshl_b32 s{sT0}, s{sW}, 10
s_add_u32 s{sT0}, s{sT0}, {ATL}
v_lshl_add_u32 v24, v24, 4, s{sT0}
v_lshl_add_u32 v24, v17, 7, v24
s_lshl_b32 s{sT0}, s{sW}, 5
s_add_u32 s{sT0}, s{sT0}, {GL}
v_lshl_add_u32 v25, v17, 2, s{sT0}
v_and_b32 v26, 3, v17
v_lshrrev_b32 v27, 2, v17
v_lshl_add_u32 v26, v26, 6, v27
v_mul_u32_u24 v26, 896, v26
v_lshl_add_u32 v26, v16, 4, v26
s_lshl4_add_u32 s{sT0}, s{sX}, s{sJQ}
s_lshl3_add_u32 s{sT0}, s{sT0}, s{sW}
s_mul_i32 s{sT0}, s{sT0}, 14
s_add_u32 s{sT0}, s{sT0}, s{sJR}
s_lshl_b32 s{sT0}, s{sT0}, 7
""")
stamp(10)
a("s_waitcnt lgkmcnt(0)\ns_barrier")
stamp(11)
for w in range(4):
    a(f"ds_read_b128 {v(32+8*w,4)}, v22 offset:{4096*w}\nds_read_b128 {v(36+8*w,4)}, v23 offset:{4096*w}")
a("ds_read_b128 v[64:67], v24\nds_read_b32 v68, v25\ns_waitcnt lgkmcnt(6)")
for e in range(0, 8, 2): a(f"v_pk_add_f32 {v(32+e,2)}, {v(32+e,2)}, {v(40+e,2)}")
a("s_waitcnt lgkmcnt(2)")
for e in range(0, 8, 2): a(f"v_pk_add_f32 {v(48+e,2)}, {v(48+e,2)}, {v(56+e,2)}")
for e in range(0, 8, 2): a(f"v_pk_add_f32 {v(32+e,2)}, {v(32+e,2)}, {v(48+e,2)}")
a("s_waitcnt lgkmcnt(0)")
for e in range(8):
    if e % 2 == 0: a(f"v_lshlrev_b32 v{40+e}, 16, v{64+e//2}")
    else: a(f"v_and_b32 v{40+e}, 0xffff0000, v{64+e//2}")
for e in range(0, 8, 2): a(f"v_pk_add_f32 {v(40+e,2)}, {v(40+e,2)}, {v(32+e,2)} neg_lo:[0,1] neg_hi:[0,1]")
for e in range(0, 8, 2): a(f"v_pk_fma_f32 {v(32+e,2)}, {v(40+e,2)}, v[68:69], {v(32+e,2)} op_sel:[0,0,0] op_sel_hi:[1,0,1]")
for e in range(4): a(f"v_cvt_pk_bf16_f32 v{48+e}, v{32+2*e}, v{33+2*e}")
a(f"buffer_store_dwordx4 v[48:51], v26, {s(R_OUT,4)}, s{sT0} offen")
stamp(12)
dump_stamps()
a("L_exit:\ns_endpgm")

sH = 83
HR = 912
HST = 64*HR
a("L_helper:")
if CODEPF:
    a(f"""s_cmp_lg_u32 s{sW}, 1
s_cbranch_scc1 L_nopf
s_getpc_b64 s[90:91]
L_pc:
s_sub_u32 s90, s90, L_pc-{NAME}_kernel
s_subb_u32 s91, s91, 0
s_and_b32 s{sT0}, s{sJ}, 3
v_lshl_add_u32 v2, v0, 2, s{sT0}
v_lshlrev_b32 v2, 7, v2
v_min_u32 v2, L_codeend-{NAME}_kernel-4, v2
global_load_dword v4, v2, s[90:91]
L_nopf:
""")
a(f"""s_and_b32 s{sH}, s{sJ}, 3
s_lshl2_add_u32 s{sH}, s{sX}, s{sH}
v_mov_b32 v2, 0
v_lshlrev_b32 v3, 4, v0
v_lshlrev_b32 v7, 2, v0
s_lshl3_add_u32 s{sT0}, s{sH}, s{sW}
s_mul_i32 s{sT0}, s{sT0}, {8*896}
s_mul_i32 s{sT1}, s{sW}, {8*HR}
v_and_b32 v5, 7, v0
v_lshlrev_b32 v5, 4, v5
s_waitcnt lgkmcnt(0)
""")
if PROF: a(f"v_mov_b32 v{VP}, 0\nv_writelane_b32 v{VP}, s100, 0")
srd(R_X, P_U, 2048*896); srd(R_WS, P_WS, WS_USED); srd(R_WD, P_WD, 1792*896)
a(f"""s_or_b32 s{sT3}, s{sH}, s{sW}
s_cmp_lg_u32 s{sT3}, 0
s_cbranch_scc1 L_h_non
buffer_load_dword v4, v2, {s(R_WS,4)}, 0 offen sc1
s_waitcnt vmcnt(0)
v_add_u32 v4, 1, v4
v_max_u32 v4, 1, v4
global_store_dword v2, v4, {s(P_DBG,2)} sc1
buffer_store_dword v4, v2, {s(R_WS,4)}, 0 offen sc1
L_h_non:
""")
touches = []
if HELP_WD:
    a(f"""v_lshlrev_b32 v17, 7, v0
s_and_b32 s84, s{sJ}, 3
s_lshl2_add_u32 s84, s{sW}, s84
s_mul_i32 s85, s{sX}, 12
s_add_u32 s84, s84, s85
""")
    for p in [[1], [0, 1], [1, 0]][HELP_WD - 1]:
        for r in range(3):
            touches.append(f"""s_add_u32 s85, s84, {32*r}
s_sub_u32 s86, s85, 98
s_cselect_b32 s85, s85, s86
s_mul_i32 s86, s85, 147
s_lshr_b32 s86, s86, 10
s_mul_i32 s86, s86, 7
s_add_u32 s85, s85, s86
s_add_u32 s85, s85, {7*p}
s_lshl_b32 s85, s85, 13
buffer_load_dword v16, v17, {s(R_WD,4)}, s85 offen""")
for _ in range(opt("ht0", 0) if HELP_WD else 0): a(touches.pop(0))
a("s_mov_b32 exec_hi, 0x00ffffff")
for i in range(8):
    a(f"s_add_u32 m0, s{sT1}, {HR*i}")
    if i: a(f"s_add_u32 s{sT0}, s{sT0}, 896")
    a(f"buffer_load_dwordx4 v3, {s(R_X,4)}, s{sT0} offen lds")
a("s_mov_b32 exec_hi, -1")
for i in range(7): a(f"global_load_dwordx4 {v(32+4*i,4)}, v5, {s(P_GW,2)} offset:{128*i}")
HTM = opt("htm", 1) if HELP_WD else 0
for _ in range(HTM): a(touches.pop(0))
a(f"""; tr address: (4*(8half + rho) + r)*HR + (16G + 4c)*2
v_bfe_u32 v8, v0, 2, 2
v_mul_u32_u24 v8, {4*HR}, v8
v_lshrrev_b32 v9, 4, v0
v_lshl_add_u32 v8, v9, 5, v8
v_and_b32 v9, 3, v0
v_lshl_add_u32 v8, v9, 3, v8
s_lshr_b32 s{sT0}, s{sW}, 2
s_mul_i32 s{sT1}, s{sT0}, {32*HR}
s_and_b32 s{sT3}, s{sW}, 3
s_mul_i32 s{sT2_}, s{sT3}, {HR}
s_add_u32 s{sT1}, s{sT1}, s{sT2_}
v_add_u32 v8, s{sT1}, v8
s_lshl1_add_u32 s{sT0}, s{sT3}, s{sT0}
v_and_b32 v13, 7, v0
v_xor_b32 v13, s{sT0}, v13
v_lshlrev_b32 v13, 4, v13
v_lshl_add_u32 v13, v0, 7, v13
v_add_u32 v13, {HST}, v13
s_lshl_b32 s{sT1}, s{sW}, 10
s_mul_i32 s{sT0}, s{sH}, 57344
s_add_u32 s{sT0}, s{sT0}, s{sT1}
s_add_u32 s{sT0}, s{sT0}, {WS_UT}
s_add_u32 s{sT1}, s{sT1}, {HST}
v_add_u32 v14, s{sT1}, v3
v_lshrrev_b32 v9, 3, v0
s_lshl_b32 s{sT1}, s{sW}, 3
v_add_u32 v9, s{sT1}, v9
v_mul_u32_u24 v10, {HR}, v9
v_add_u32 v10, v10, v5
v_lshlrev_b32 v9, 2, v9
v_mov_b32 v11, 0
v_mov_b32 v12, 0
s_waitcnt vmcnt({HTM})
s_barrier
""")
stamp(1)
nonce_issue(4, 2)
for i in range(7):
    a(f"ds_read_b64_tr_b16 {v(64+4*i,2)}, v8 offset:{128*i}\nds_read_b64_tr_b16 {v(66+4*i,2)}, v8 offset:{128*i + 16*HR}")
for i in range(7):
    a(f"s_waitcnt lgkmcnt({12-i})\nds_write_b128 v13, {v(64+4*i,4)} offset:{8192*i}")
for i in range(7): a(f"ds_read_b128 {v(96+4*i,4)}, v10 offset:{128*i}")
a("s_waitcnt lgkmcnt(7)\ns_barrier")
fstamp(4)
for i in range(7): a(f"ds_read_b128 {v(64+4*i,4)}, v14 offset:{8192*i}")
for i in range(7):
    a(f"s_waitcnt lgkmcnt({6-i})")
    if i: a(f"s_add_u32 s{sT0}, s{sT0}, 8192")
    a(f"buffer_store_dwordx4 {v(64+4*i,4)}, v3, {s(R_WS,4)}, s{sT0} offen sc1")
fstamp(5)
for i in range(14):
    a(f"v_dot2_f32_bf16 v11, v{96+2*i}, v{32+2*i}, v11\nv_dot2_f32_bf16 v12, v{97+2*i}, v{33+2*i}, v12")
a(f"""v_add_f32 v11, v11, v12
v_add_f32_dpp v11, v11, v11 quad_perm:[1,0,3,2] row_mask:0xf bank_mask:0xf
v_add_f32_dpp v11, v11, v11 quad_perm:[2,3,0,1] row_mask:0xf bank_mask:0xf
v_add_f32_dpp v11, v11, v11 row_half_mirror row_mask:0xf bank_mask:0xf
v_mul_f32 v11, {f32(-LOG2E)}, v11
v_exp_f32 v11, v11
v_add_f32 v11, 1.0, v11
v_rcp_f32 v11, v11
s_lshl_b32 s{sT1}, s{sH}, 8
s_add_u32 s{sT1}, s{sT1}, {WS_G}
buffer_store_dword v11, v9, {s(R_WS,4)}, s{sT1} offen sc1
""")
HT1 = opt("ht1", 0) if HELP_WD else 0
for _ in range(HT1): a(touches.pop(0))
a(f"s_waitcnt vmcnt({HT1})")
fstamp(6)
a(f"""s_barrier
s_cmp_lg_u32 s{sW}, 0
s_cbranch_scc1 L_h_end
""")
nonce_check(4, 2)
a(f"""s_lshl_b32 s{sT1}, s{sH}, 8
s_add_u32 s{sT1}, s{sT1}, {WS_FLAGU}
buffer_store_dword v4, v7, {s(R_WS,4)}, s{sT1} offen sc1
L_h_end:
s_barrier
""")
stamp(2)
for t in touches: a(t)
if PROF: a("s_waitcnt vmcnt(0)")
stamp(3)
dump_stamps()
a("s_endpgm\nL_codeend:")

hdr = open("cdna_kernels/" + NAME + ".s.ref").read().split("; @launch")[0]
txt = hdr + f"""; @launch grid=(256,1,1) block=(512,1,1) lds=163840
.amdgcn_target "amdgcn-amd-amdhsa--gfx950"
.text
.globl {NAME}_kernel
.p2align 8
.type {NAME}_kernel,@function
""" + a.text() + f""".section .rodata,"a"
.p2align 6
.amdhsa_kernel {NAME}_kernel
  .amdhsa_next_free_vgpr 256
  .amdhsa_next_free_sgpr 102
  .amdhsa_accum_offset 256
  .amdhsa_group_segment_fixed_size 0
  .amdhsa_kernarg_size 136
  .amdhsa_user_sgpr_count 2
  .amdhsa_user_sgpr_kernarg_segment_ptr 1
  .amdhsa_system_sgpr_workgroup_id_x 1
.end_amdhsa_kernel
"""
open(OUT, "w").write(txt)
print("wrote", OUT, "instructions:", len(a.ins))
```

```python
import sys
N = "gated_mix__ssm_conv_s4__glu_gated_glu__prompt"
def mk(src, dst, K, lane_end=61, wave=0):
    s = open(src).read()
    line = "; @launch grid=(256,1,1) block=(512,1,1) lds=163840\n"
    one = f"; @launch kernel={N}_kernel grid=(256,1,1) block=(512,1,1) lds=163840\n"
    b = f""".globl amp_kernel
.p2align 8
.type amp_kernel,@function
amp_kernel:
  s_cmp_ge_u32 s2, 1
  s_cbranch_scc1 L_ampend
  s_load_dwordx2 s[4:5], s[0:1], 128
  s_load_dwordx2 s[6:7], s[0:1], 120
  v_lshlrev_b32 v1, 11, v0
  s_waitcnt lgkmcnt(0)
  s_mov_b64 s[8:9], s[4:5]
  s_mov_b32 s10, 0x1200000
  s_mov_b32 s11, 0x20000
"""
    for c in range(3):
        b += f"  s_mov_b32 s12, {0x1000000 + c*64*2048 + wave*256}\n  buffer_load_dword v{4+c}, v1, s[8:11], s12 offen offset:{62*4}\n  buffer_load_dword v{8+c}, v1, s[8:11], s12 offen offset:{lane_end*4}\n"
    b += "  s_waitcnt vmcnt(0)\n  v_min3_u32 v4, v4, v5, v6\n  v_max3_u32 v8, v8, v9, v10\n  s_mov_b32 s20, -1\n  s_mov_b32 s21, 0\n  s_nop 1\n"
    for l in range(64):
        b += f"  v_readlane_b32 s22, v4, {l}\n  v_readlane_b32 s23, v8, {l}\n  s_nop 1\n  s_min_u32 s20, s20, s22\n  s_max_u32 s21, s21, s23\n"
    b += f"""  s_sub_u32 s21, s21, s20
  s_min_u32 s21, s21, 5000
  v_mov_b32 v2, s21
  v_mov_b32 v3, 0
  global_store_dword v3, v2, s[6:7]
  s_mul_i32 s21, s21, {K}
  s_memrealtime s[24:25]
  s_waitcnt lgkmcnt(0)
L_ampl:
  s_memrealtime s[26:27]
  s_waitcnt lgkmcnt(0)
  s_sub_u32 s28, s26, s24
  s_cmp_lt_u32 s28, s21
  s_cbranch_scc1 L_ampl
L_ampend:
  s_endpgm
"""
    kd = """.p2align 6
.amdhsa_kernel amp_kernel
  .amdhsa_next_free_vgpr 32
  .amdhsa_next_free_sgpr 48
  .amdhsa_accum_offset 32
  .amdhsa_group_segment_fixed_size 0
  .amdhsa_kernarg_size 136
  .amdhsa_user_sgpr_count 2
  .amdhsa_user_sgpr_kernarg_segment_ptr 1
  .amdhsa_system_sgpr_workgroup_id_x 1
.end_amdhsa_kernel
"""
    t = s.replace(line, one + "; @launch kernel=amp_kernel grid=(1,1,1) block=(64,1,1) lds=0\n").replace('.section .rodata,"a"\n', b + '.section .rodata,"a"\n' + kd)
    open(dst, "w").write(t)
mk("pr.s", "a0.s", 0); mk("pr.s", "a1.s", 10)
mk("pr.s", "a2.s", 10, 1); mk("pr.s", "a3.s", 10, 2); mk("pr.s", "a4.s", 10, 3); mk("pr.s", "a5.s", 10, 9)
```
